```python
import torch

def _softmax(x, axis=-1):
    return torch.softmax(x, dim=axis)
def _gelu(x):
    return torch.nn.functional.gelu(x, approximate="tanh")
def _silu(x):
    return torch.nn.functional.silu(x)
def _sigmoid(x):
    return torch.sigmoid(x)
def _layernorm(x, axis=-1, eps=1e-5):
    m = x.mean(dim=axis, keepdim=True)
    v = x.var(dim=axis, keepdim=True, unbiased=False)
    return (x - m) / torch.sqrt(v + eps)
def _scatter_add(tgt, idx, src, axis=0):
    return tgt.clone().index_add_(axis, idx, src)
def _segment_sum(src, seg, n):
    out = torch.zeros((n,) + src.shape[1:], dtype=src.dtype)
    return out.index_add_(0, seg, src)
def _pad(x, pw):
    flat = tuple(v for pair in reversed(pw) for v in pair)
    return torch.nn.functional.pad(x, flat)

kernel_name = 'parallel_sum__gqa_block_cached__geglu_ffn__decode'

def setup_inputs():

    _w = (lambda a: (lambda t: t.to(torch.bfloat16) if t.is_floating_point() else t)(torch.as_tensor(a)))
    def _A_setup():
        B, Sq, D = 2, 1, 576
        Hq, Hkv, Sk, Dh = 32, 16, 32768, 128
        assert Hq % Hkv == 0, (Hq, Hkv)
        return {
            "x": _w((lambda *s: torch.randn(*s, dtype=torch.bfloat16) * 0.05)(B, Sq, D)),
            "k_cache": _w((lambda *s: torch.randn(*s, dtype=torch.bfloat16) * 3.2)(B, Hkv, Sk, Dh)),
            "v_cache": _w((lambda *s: torch.randn(*s, dtype=torch.bfloat16) * 1.6)(B, Hkv, Sk, Dh)),
            "wq": _w((lambda *s: torch.randn(*s, dtype=torch.bfloat16) * 3.2)(D, Hq * Dh) * (D ** -0.5)),
            "wo": _w((lambda *s: torch.randn(*s, dtype=torch.bfloat16) * 1.6)(Hq * Dh, D) * ((Hq * Dh) ** -0.5)),
        }
    _A_in = _A_setup()

    def _B_setup():
        B, S, D, F = 2, 1, 576, 4608
        return {
            "x": _w((lambda *s: torch.randn(*s, dtype=torch.bfloat16) * 0.05)(B, S, D)),
            "w_gate": _w((lambda *s: torch.randn(*s, dtype=torch.bfloat16) * 0.05)(D, F)),
            "w_up": _w((lambda *s: torch.randn(*s, dtype=torch.bfloat16) * 0.05)(D, F)),
            "w_down": _w((lambda *s: torch.randn(*s, dtype=torch.bfloat16) * 0.05)(F, D)),
        }
    _B_in = _B_setup()

    return {
        "A_x": _A_in["x"],
        "A_k_cache": _A_in["k_cache"],
        "A_v_cache": _A_in["v_cache"],
        "A_wq": _A_in["wq"],
        "A_wo": _A_in["wo"],
        "B_x": _B_in["x"],
        "B_w_gate": _B_in["w_gate"],
        "B_w_up": _B_in["w_up"],
        "B_w_down": _B_in["w_down"],
    }

def reference(A_x, A_k_cache, A_v_cache, A_wq, A_wo, B_x, B_w_gate, B_w_up, B_w_down):
    def _A_ref(x, k_cache, v_cache, wq, wo):
        B, Sq, D = x.shape
        Hq, Dh = 32, 128
        Hkv = k_cache.shape[1]
        rep = Hq // Hkv
        q = (lambda x, *d: x.permute(*d))((x @ wq).reshape(B, Sq, Hq, Dh), 0, 2, 1, 3)
        k = (lambda x, n, axis: torch.repeat_interleave(x, n, dim=axis))(k_cache, rep, axis=1)
        v = (lambda x, n, axis: torch.repeat_interleave(x, n, dim=axis))(v_cache, rep, axis=1)
        scores = torch.einsum("bhqd,bhkd->bhqk", q, k) * (Dh ** -0.5)
        p = _softmax(scores, axis=-1)
        o = torch.einsum("bhqk,bhkd->bhqd", p, v)
        return (lambda x, *d: x.permute(*d))(o, 0, 2, 1, 3).reshape(B, Sq, Hq * Dh) @ wo

    def _B_ref(x, w_gate, w_up, w_down):
        return (_gelu(x @ w_gate) * (x @ w_up)) @ w_down

    x = A_x
    xn = _layernorm(x, axis=-1)
    return x + _A_ref(xn, A_k_cache, A_v_cache, A_wq, A_wo) + _B_ref(xn, B_w_gate, B_w_up, B_w_down)
```

```python
class Asm:
    def __init__(self):
        self.lines = []
        self.uid = 0
    def __call__(self, s):
        for ln in s.strip("\n").split("\n"):
            self.lines.append(ln.strip() if not ln.strip().endswith(":") else ln.strip())
    def c(self, s):
        self.lines.append("; " + s)
    def label(self, base="L"):
        self.uid += 1
        return f"{base}_{self.uid}"
    def text(self):
        return "\n".join(("    " + l if not (l.endswith(":") or l.startswith(".") or l.startswith(";")) else l) for l in self.lines) + "\n"
    def srd(self, d, b, nbytes):
        self(f"s_mov_b32 s{d}, s{b}")
        self(f"s_mov_b32 s{d+1}, s{b+1}")
        self(f"s_mov_b32 s{d+2}, {nbytes:#x}")
        self(f"s_mov_b32 s{d+3}, 0x20000")
    def kernel_begin(self, name):
        self(f".globl {name}")
        self(".p2align 8")
        self(f".type {name},@function")
        self(f"{name}:")
    def kd(self, name, nv, ao, ns=102):
        self(f".amdhsa_kernel {name}")
        self(f"  .amdhsa_next_free_vgpr {nv}")
        self(f"  .amdhsa_next_free_sgpr {ns}")
        self(f"  .amdhsa_accum_offset {ao}")
        self("  .amdhsa_group_segment_fixed_size 0")
        self("  .amdhsa_kernarg_size 96")
        self("  .amdhsa_user_sgpr_count 2")
        self("  .amdhsa_user_sgpr_kernarg_segment_ptr 1")
        self("  .amdhsa_system_sgpr_workgroup_id_x 1")
        self(".end_amdhsa_kernel")

def vr(a, n):
    return f"v[{a}:{a+n-1}]" if n > 1 else f"v{a}"
def ar(a, n):
    return f"a[{a}:{a+n-1}]" if n > 1 else f"a{a}"
def sr(a, n):
    return f"s[{a}:{a+n-1}]" if n > 1 else f"s{a}"

import struct
def f32(x):
    return "0x%08x" % struct.unpack("<I", struct.pack("<f", x))[0]
```

```python
import sys, math
from asmlib import *

HEADER = open("parallel_sum__gqa_block_cached__geglu_ffn__decode.s.ref").read().split("; Override launch")[0]

WS_QG   = 0x1000
WS_PART = 0x10000
PART_STRIDE = 2176
WS_FP   = 0x100000
WS_YP   = 0x300000
WS_SIZE = 0x400000

SX, SK, SV, SWQ, SWO, SWG, SWU, SWD, SOUT, SWS = 28, 32, 36, 40, 44, 48, 52, 56, 60, 64
LOG2E = 1.4426950408889634
SCALE = 128 ** -0.5

def prologue(a, nwg, endlabel):
    a(f"s_cmp_ge_u32 s2, {nwg}")
    a(f"s_cbranch_scc1 {endlabel}")
    a("s_load_dwordx16 s[4:19], s[0:1], 0")
    a("s_load_dwordx8 s[20:27], s[0:1], 64")
    a("v_lshrrev_b32 v1, 6, v0")
    a("v_and_b32 v0, 63, v0")
    a("v_readfirstlane_b32 s3, v1")
    a("s_waitcnt lgkmcnt(0)")
    a.srd(SX, 4, 2304)
    a.srd(SK, 6, 1 << 28)
    a.srd(SV, 8, 1 << 28)
    a.srd(SWQ, 10, 576 * 4096 * 2)
    a.srd(SWO, 12, 4096 * 576 * 2)
    a.srd(SWG, 16, 576 * 4608 * 2)
    a.srd(SWU, 18, 576 * 4608 * 2)
    a.srd(SWD, 20, 4608 * 576 * 2)
    a.srd(SOUT, 22, 2304)
    a.srd(SWS, 26, WS_SIZE)

def rowsum16(a, v, t, op="add"):
    for m in ("quad_perm:[1,0,3,2]", "quad_perm:[2,3,0,1]", "row_half_mirror", "row_mirror"):
        a("s_nop 1")
        a(f"v_{op}_f32_dpp v{v}, v{v}, v{v} {m} row_mask:0xf bank_mask:0xf")

def xchg(a, v, t, which, op="add"):
    a(f"v_mov_b32 v{t}, v{v}")
    a("s_nop 1")
    a(f"v_permlane{which}_swap_b32 v{v}, v{t}")
    a("s_nop 1")
    a(f"v_{op}_f32 v{v}, v{v}, v{t}")

def bf16r(a, v, t=None):
    a(f"v_cvt_pk_bf16_f32 v{v}, v{v}, v{v}")
    a(f"v_and_b32 v{v}, 0xffff0000, v{v}")

def ln_loads(a, vx, vt):
    a(f"v_lshrrev_b32 v{vt}, 5, v0")
    a(f"v_mul_u32_u24 v{vt}, 1152, v{vt}")
    a(f"v_and_b32 v{vt+1}, 31, v0")
    a(f"v_lshl_add_u32 v{vt}, v{vt+1}, 2, v{vt}")
    for i in range(9):
        a(f"buffer_load_dword v{vx+i}, v{vt}, s[{SX}:{SX+3}], 0 offen offset:{128*i}")

def ln_compute(a, vx, vf, vt, lds_xn):
    for i in range(9):
        a(f"v_lshlrev_b32 v{vf+2*i}, 16, v{vx+i}")
        a(f"v_and_b32 v{vf+2*i+1}, 0xffff0000, v{vx+i}")
    s, t, m, q, sd, rs = vt, vt + 1, vt + 2, vt + 3, vt + 4, vt + 5
    a(f"v_add_f32 v{s}, v{vf}, v{vf+1}")
    for i in range(2, 18):
        a(f"v_add_f32 v{s}, v{s}, v{vf+i}")
    rowsum16(a, s, t)
    xchg(a, s, t, 16)
    a(f"v_mul_f32 v{m}, {f32(1.0/576)}, v{s}")
    a(f"v_sub_f32 v{t}, v{vf}, v{m}")
    a(f"v_mul_f32 v{q}, v{t}, v{t}")
    for i in range(1, 18):
        a(f"v_sub_f32 v{t}, v{vf+i}, v{m}")
        a(f"v_fmac_f32 v{q}, v{t}, v{t}")
    rowsum16(a, q, t)
    xchg(a, q, t, 16)
    a(f"v_mul_f32 v{q}, {f32(1.0/576)}, v{q}")
    bf16r(a, m)
    bf16r(a, q)
    a(f"v_add_f32 v{q}, {f32(1e-5)}, v{q}")
    bf16r(a, q)
    a(f"v_sqrt_f32 v{sd}, v{q}")
    a("s_nop 0")
    bf16r(a, sd)
    a(f"v_rcp_f32 v{rs}, v{sd}")
    a(f"v_and_b32 v{s}, 31, v0")
    a(f"v_lshlrev_b32 v{s}, 4, v{s}")
    a(f"v_lshrrev_b32 v{t}, 5, v0")
    a(f"v_lshl_add_u32 v{s}, v{t}, 2, v{s}")
    for i in range(9):
        lo, hi = vf + 2 * i, vf + 2 * i + 1
        a(f"v_sub_f32 v{lo}, v{lo}, v{m}")
        a(f"v_sub_f32 v{hi}, v{hi}, v{m}")
        a(f"v_cvt_pk_bf16_f32 v{t}, v{lo}, v{hi}")
        a(f"v_lshlrev_b32 v{lo}, 16, v{t}")
        a(f"v_and_b32 v{hi}, 0xffff0000, v{t}")
        for r in (lo, hi):
            a(f"v_mul_f32 v{t}, v{r}, v{rs}")
            a(f"v_fma_f32 v{r}, -v{t}, v{sd}, v{r}")
            a(f"v_fma_f32 v{r}, v{r}, v{rs}, v{t}")
        a(f"v_cvt_pk_bf16_f32 v{t}, v{lo}, v{hi}")
        a(f"v_lshlrev_b32 v{lo}, 16, v{t}")
        a(f"v_and_b32 v{hi}, 0xffff0000, v{t}")
        a(f"ds_write_b32 v{s}, v{lo} offset:{lds_xn + 512*i}")
        a(f"ds_write_b32 v{s}, v{hi} offset:{lds_xn + 512*i + 8}")

def slice_loads(a, srd, ld, scol, vw, vt, flags=""):
    for i in range(9):
        if i == 0:
            a(f"s_mov_b32 s72, s{scol}")
        else:
            a(f"s_add_u32 s72, s72, {8*ld}")
        a(f"buffer_load_dword v{vw+i}, v{vt}, s[{srd}:{srd+3}], s72 offen {flags}")

def slice_fma(a, vw, vxn, vacc, vt):
    for i in range(9):
        a(f"v_lshlrev_b32 v{vt}, 16, v{vw+i}")
        a(f"v_and_b32 v{vt+1}, 0xffff0000, v{vw+i}")
        op = "v_mul_f32" if i == 0 else "v_fmac_f32"
        a(f"{op} v{vacc}, v{vt}, v{vxn+2*i}")
        a(f"{op} v{vacc+1}, v{vt+1}, v{vxn+2*i}")
        a(f"{op} v{vacc+2}, v{vt}, v{vxn+2*i+1}")
        a(f"{op} v{vacc+3}, v{vt+1}, v{vxn+2*i+1}")
    a("s_nop 1")
    for k in range(4):
        a(f"v_add_f32_dpp v{vacc+k}, v{vacc+k}, v{vacc+k} row_ror:8 row_mask:0xf bank_mask:0xf")
    for which in (16, 32):
        for k in range(4):
            a(f"v_mov_b32 v{vt+k}, v{vacc+k}")
        a("s_nop 1")
        for k in range(4):
            a(f"v_permlane{which}_swap_b32 v{vacc+k}, v{vt+k}")
        a("s_nop 1")
        for k in range(4):
            a(f"v_add_f32 v{vacc+k}, v{vacc+k}, v{vt+k}")

def perm_tile(a, vsrc, vdst, j, slo, shi):
    w = j >> 1
    sel = shi if (j & 1) else slo
    for x in range(4):
        a(f"v_perm_b32 v{vdst+x}, v{vsrc+(2*x+1)*4+w}, v{vsrc+(2*x)*4+w}, s{sel}")

def zvariants(a, vz, vdst, vrow, sm):
    for j in range(8):
        a(f"v_cmp_eq_u32 s[{sm}:{sm+1}], {2*(j%4) + j//4}, v{vrow}")
        a("s_nop 1")
        for x in range(4):
            a(f"v_cndmask_b32 v{vdst+4*j+x}, 0, v{vz+x}, s[{sm}:{sm+1}]")

def k_prep(a):
    name = "prep_kernel"
    a.kernel_begin(name)
    prologue(a, 256, "prep_end")
    LXN, LRED, LHZ = 0, 4608, 4608 + 5 * 1024
    a("s_and_b32 s73, s2, 7")
    a("s_lshr_b32 s74, s2, 3")
    a("s_lshl_b32 s75, s73, 5")
    a("s_add_u32 s75, s75, s74")
    a("s_lshl_b32 s76, s75, 5")
    a("s_mul_i32 s77, s73, 36")
    a("s_add_u32 s77, s77, s74")
    a("s_add_u32 s78, s77, 32")
    a("s_lshl_b32 s79, s77, 5")
    a("s_lshl_b32 s80, s78, 5")
    a("s_cmp_lt_u32 s74, 4")
    a("s_cselect_b32 s80, s80, 0x40000000")
    VX, VF, VT = 8, 20, 2
    ln_loads(a, VX, VT)
    a("s_mul_i32 s72, s3, 72")
    a("v_lshrrev_b32 v40, 3, v0")
    a("v_add_u32 v40, s72, v40")
    a("v_and_b32 v41, 7, v0")
    a("v_lshlrev_b32 v41, 2, v41")
    a("v_lshlrev_b32 v42, 13, v40")
    a("v_add_u32 v42, v42, v41")
    a("v_mul_u32_u24 v43, 9216, v40")
    a("v_add_u32 v43, v43, v41")
    VW = 48
    slice_loads(a, SWQ, 8192, 76, VW, 42, "nt")
    slice_loads(a, SWG, 9216, 79, VW + 9, 43, "nt")
    slice_loads(a, SWU, 9216, 79, VW + 18, 43, "nt")
    slice_loads(a, SWG, 9216, 80, VW + 27, 43, "nt")
    slice_loads(a, SWU, 9216, 80, VW + 36, 43, "nt")
    VD = 128
    a("v_lshrrev_b32 v44, 4, v0")
    a("v_and_b32 v45, 15, v0")
    a("s_lshl_b32 s72, s77, 4")
    a("s_lshl_b32 s81, s78, 4")
    a("s_sub_u32 s81, s81, 16")
    a("v_mov_b32 v46, s72")
    a("v_mov_b32 v47, s81")
    a("v_cmp_gt_u32 vcc, 2, v44")
    a("s_nop 1")
    a("v_cndmask_b32 v46, v47, v46, vcc")
    a("v_lshl_add_u32 v46, v44, 3, v46")
    a("v_mul_u32_u24 v46, 1152, v46")
    a("s_lshl_b32 s72, s3, 4")
    a("v_add_u32 v47, s72, v45")
    a("v_lshl_add_u32 v46, v47, 4, v46")
    a("v_cmp_lt_u32 vcc, 71, v47")
    a("v_mov_b32 v47, 0x40000000")
    a("s_nop 0")
    a("v_cndmask_b32 v46, v46, v47, vcc")
    a("s_cmp_lt_u32 s74, 4")
    a("s_cselect_b32 s72, 4, 2")
    a("v_cmp_le_u32 vcc, s72, v44")
    a("s_nop 1")
    a("v_cndmask_b32 v46, v46, v47, vcc")
    for i in range(8):
        a(f"s_mov_b32 s72, {1152*i}")
        a(f"buffer_load_dwordx4 v[{VD+4*i}:{VD+4*i+3}], v46, s[{SWD}:{SWD+3}], s72 offen nt")
    a("s_waitcnt vmcnt(53)")
    ln_compute(a, VX, VF, VT, LXN)
    a("s_waitcnt lgkmcnt(0)")
    VXN = 96
    a("v_lshlrev_b32 v2, 3, v40")
    for i in range(9):
        a(f"ds_read_b64 v[{VXN+2*i}:{VXN+2*i+1}], v2 offset:{LXN + 64*i}")
    a("s_waitcnt lgkmcnt(0)")
    a("s_lshl_b32 s72, s3, 7")
    a("v_lshlrev_b32 v3, 4, v0")
    a("v_add_u32 v3, s72, v3")
    for sl in range(5):
        a(f"s_waitcnt vmcnt({8 + 9*(4-sl)})")
        slice_fma(a, VW + 9 * sl, VXN, 8, 12)
        a("s_mov_b64 exec, 0xff")
        a(f"ds_write_b128 v3, v[8:11] offset:{LRED + 1024*sl}")
        a("s_mov_b64 exec, -1")
    a("s_waitcnt lgkmcnt(0)")
    a("s_barrier")
    a("s_cmp_eq_u32 s3, 0")
    a("s_cbranch_scc0 prep_notq")
    a("v_lshlrev_b32 v2, 3, v0")
    for w in range(8):
        a(f"ds_read_b64 v[{8+2*w}:{9+2*w}], v2 offset:{LRED + 128*w}")
    a("s_waitcnt lgkmcnt(0)")
    for w in range(1, 8):
        a(f"v_add_f32 v8, v8, v{8+2*w}")
        a(f"v_add_f32 v9, v9, v{9+2*w}")
    a("v_cvt_pk_bf16_f32 v8, v8, v9")
    a("v_mov_b32 v9, 0x1234")
    a("v_and_b32 v2, 1, v0")
    a("v_lshlrev_b32 v2, 14, v2")
    a("v_lshrrev_b32 v3, 1, v0")
    a("v_lshl_add_u32 v2, v3, 3, v2")
    a("s_lshl_b32 s72, s75, 6")
    a(f"s_add_u32 s72, s72, {WS_QG}")
    a("s_mov_b64 exec, 0xffff")
    a(f"buffer_store_dwordx2 v[8:9], v2, s[{SWS}:{SWS+3}], s72 offen")
    a("s_mov_b64 exec, -1")
    a("prep_notq:")
    a("s_cmp_eq_u32 s3, 1")
    a("s_cbranch_scc0 prep_noth")
    a("v_and_b32 v2, 15, v0")
    a("v_lshlrev_b32 v2, 3, v2")
    a("v_bfe_u32 v3, v0, 4, 1")
    a("v_lshl_add_u32 v2, v3, 11, v2")
    for w in range(8):
        a(f"ds_read_b64 v[{8+2*w}:{9+2*w}], v2 offset:{LRED + 1024 + 128*w}")
        a(f"ds_read_b64 v[{24+2*w}:{25+2*w}], v2 offset:{LRED + 2048 + 128*w}")
    a("s_waitcnt lgkmcnt(0)")
    for w in range(1, 8):
        a(f"v_add_f32 v8, v8, v{8+2*w}")
        a(f"v_add_f32 v9, v9, v{9+2*w}")
        a(f"v_add_f32 v24, v24, v{24+2*w}")
        a(f"v_add_f32 v25, v25, v{25+2*w}")
    for r in (8, 9, 24, 25):
        bf16r(a, r)
    k0 = math.sqrt(2.0 / math.pi)
    for g in (8, 9):
        a(f"v_mul_f32 v10, v{g}, v{g}")
        a(f"v_mul_f32 v10, v10, v{g}")
        a(f"v_mov_b32 v11, {f32(0.044715)}")
        a(f"v_fma_f32 v10, v10, v11, v{g}")
        a(f"v_mul_f32 v10, {f32(-2.0*k0*LOG2E)}, v10")
        a(f"v_exp_f32 v10, v10")
        a("s_nop 0")
        a(f"v_add_f32 v10, 1.0, v10")
        a(f"v_rcp_f32 v10, v10")
        a("s_nop 0")
        a(f"v_mul_f32 v{g}, v{g}, v10")
        bf16r(a, g)
    a("v_mul_f32 v8, v8, v24")
    a("v_mul_f32 v9, v9, v25")
    a("v_cvt_pk_bf16_f32 v8, v8, v9")
    a("v_and_b32 v2, 1, v0")
    a("v_lshlrev_b32 v2, 6, v2")
    a("v_lshl_add_u32 v2, v3, 5, v2")
    a("v_bfe_u32 v4, v0, 1, 3")
    a("v_lshl_add_u32 v2, v4, 2, v2")
    a("s_mov_b64 exec, 0xffffffff")
    a(f"ds_write_b32 v2, v8 offset:{LHZ}")
    a("s_mov_b64 exec, -1")
    a("s_waitcnt lgkmcnt(0)")
    a("prep_noth:")
    a("s_barrier")
    a("s_cmp_lt_u32 s3, 5")
    a("s_cbranch_scc0 prep_end")
    a("v_and_b32 v2, 1, v0")
    a("v_lshlrev_b32 v2, 6, v2")
    a("v_lshl_add_u32 v2, v44, 4, v2")
    a(f"ds_read_b128 v[8:11], v2 offset:{LHZ}")
    a("v_lshrrev_b32 v4, 1, v45")
    a("s_mov_b32 s82, 0x05040100")
    a("s_mov_b32 s83, 0x07060302")
    a("s_waitcnt lgkmcnt(0)")
    zvariants(a, 8, 48, 4, 84)
    a("s_waitcnt vmcnt(0)")
    for j in range(8):
        tb = 16 + 4 * (j & 1)
        perm_tile(a, VD, tb, j, 82, 83)
        a("s_nop 1")
        c = "0" if j == 0 else "v[12:15]"
        a(f"v_mfma_f32_16x16x32_bf16 v[12:15], v[{48+4*j}:{51+4*j}], v[{tb}:{tb+3}], {c}")
    a("s_lshl_b32 s72, s3, 7")
    a("v_lshl_add_u32 v2, v45, 3, v44")
    a("v_add_u32 v2, s72, v2")
    a("v_cmp_gt_u32 vcc, 576, v2")
    a("v_lshlrev_b32 v2, 3, v2")
    a("s_mul_i32 s72, s2, 4608")
    a(f"s_add_u32 s72, s72, {WS_FP}")
    a("s_nop 7")
    a("s_and_saveexec_b64 s[84:85], vcc")
    a(f"buffer_store_dwordx2 v[12:13], v2, s[{SWS}:{SWS+3}], s72 offen")
    a(f"buffer_store_dwordx2 v[14:15], v2, s[{SWS}:{SWS+3}], s72 offen offset:32")
    a("prep_end:")
    a("s_endpgm")
    return name, 168, 168, "grid=(256,1,1) block=(512,1,1) lds=10240"

def k_attn(a, rot=1):
    name = "attn_kernel"
    a.kernel_begin(name)
    prologue(a, 256, "attn_end")
    VOK, VOV = 1, 2
    VM, VL, VAL, VT0 = 3, 4, 5, 6
    VS = 16
    VP = 24
    VPT = 28
    VQ = 36
    VACC = 52
    VV = 84
    NV = 148
    AK = 0
    a("s_lshr_b32 s73, s2, 3")
    a("s_and_b32 s74, s2, 7")
    a("s_lshl_b32 s75, s74, 3")
    a("s_add_u32 s75, s75, s3")
    a("s_lshl_b32 s75, s75, 13")
    a("s_lshl_b32 s76, s73, 23")
    a("s_add_u32 s75, s75, s76")
    a(f"s_mul_i32 s77, s73, {rot}")
    a("s_mov_b32 s78, 0")
    a("s_mov_b32 s82, 0x05040100")
    a("s_mov_b32 s83, 0x07060302")
    a(f"s_mov_b32 s86, {f32(SCALE)}")
    a(f"s_mov_b32 s87, {f32(LOG2E)}")
    a("v_and_b32 v6, 3, v0")
    a("v_lshlrev_b32 v6, 2, v6")
    a("v_bfe_u32 v7, v0, 2, 2")
    a("v_add_u32 v6, v6, v7")
    a("v_lshlrev_b32 v6, 8, v6")
    a("v_lshrrev_b32 v7, 4, v0")
    a(f"v_lshl_add_u32 v{VOK}, v7, 4, v6")
    a(f"v_lshlrev_b32 v{VOV}, 4, v0")
    def round_off():
        a("s_and_b32 s79, s77, 15")
        a("s_lshl_b32 s79, s79, 19")
        a("s_add_u32 s79, s79, s75")
        a("s_cmp_lt_u32 s78, 16")
        a("s_cselect_b32 s79, s79, 0x40000000")
        a("s_add_u32 s80, s79, 4096")
        a("s_add_u32 s77, s77, 1")
        a("s_add_u32 s78, s78, 1")
    def kloads(buf):
        for t in range(2):
            for s in range(4):
                r = AK + 32 * buf + 16 * t + 4 * s
                a(f"buffer_load_dwordx4 a[{r}:{r+3}], v{VOK}, s[{SK}:{SK+3}], s{79+t} offen offset:{64*s} nt")
    def vloads(buf, so):
        for i in range(8):
            r = VV + 32 * buf + 4 * i
            a(f"buffer_load_dwordx4 v[{r}:{r+3}], v{VOV}, s[{SV}:{SV+3}], s{so + i//4} offen offset:{1024*(i%4)} nt")
    a("s_lshr_b32 s84, s73, 4")
    a("s_and_b32 s85, s73, 15")
    a("s_lshl_b32 s84, s84, 14")
    a("s_lshl_b32 s85, s85, 10")
    a("s_add_u32 s84, s84, s85")
    a(f"s_add_u32 s84, s84, {WS_QG}")
    a("v_and_b32 v6, 15, v0")
    a("v_lshlrev_b32 v8, 9, v6")
    a("v_lshl_add_u32 v8, v7, 5, v8")
    a("v_cmp_gt_u32 vcc, 2, v6")
    a("v_mov_b32 v9, 0x40000000")
    a("s_nop 0")
    a("v_cndmask_b32 v8, v9, v8, vcc")
    for s in range(4):
        r = VACC + 8 * s
        a(f"buffer_load_dwordx4 v[{r}:{r+3}], v8, s[{SWS}:{SWS+3}], s84 offen offset:{128*s}")
        a(f"buffer_load_dwordx4 v[{r+4}:{r+7}], v8, s[{SWS}:{SWS+3}], s84 offen offset:{128*s+16}")
    for buf in range(2):
        round_off()
        kloads(buf)
        vloads(buf, 79)
    a("s_waitcnt vmcnt(32)")
    for s in range(4):
        for x in range(4):
            a(f"v_mov_b32 v{VQ+4*s+x}, v{VACC+8*s+2*x}")
    for i in range(32):
        a(f"v_mov_b32 v{VACC+i}, 0")
    a(f"v_mov_b32 v{VM}, 0xf149f2ca")
    a(f"v_mov_b32 v{VL}, 0")
    a("s_mov_b32 s81, 8")
    a("attn_loop:")
    for buf in range(2):
        a("s_waitcnt vmcnt(24)")
        for s in range(4):
            for t in range(2):
                r = AK + 32 * buf + 16 * t + 4 * s
                c = "0" if s == 0 else vr(VS + 4 * t, 4)
                a(f"v_mfma_f32_16x16x32_bf16 {vr(VS+4*t,4)}, a[{r}:{r+3}], {vr(VQ+4*s,4)}, {c}")
        round_off()
        a("s_mov_b32 s88, s79")
        a("s_mov_b32 s89, s80")
        kloads(buf)
        T = VT0
        for x in range(4):
            a(f"v_cvt_pk_bf16_f32 v{T+x}, v{VS+2*x}, v{VS+2*x+1}")
        for x in range(4):
            a(f"v_lshlrev_b32 v{VS+2*x}, 16, v{T+x}")
            a(f"v_and_b32 v{VS+2*x+1}, 0xffff0000, v{T+x}")
        for x in range(8):
            a(f"v_mul_f32 v{VS+x}, s86, v{VS+x}")
        for x in range(4):
            a(f"v_cvt_pk_bf16_f32 v{T+x}, v{VS+2*x}, v{VS+2*x+1}")
        for x in range(4):
            a(f"v_lshlrev_b32 v{VS+2*x}, 16, v{T+x}")
            a(f"v_and_b32 v{VS+2*x+1}, 0xffff0000, v{T+x}")
        a(f"v_max3_f32 v{T}, v{VS}, v{VS+1}, v{VS+2}")
        a(f"v_max3_f32 v{T+1}, v{VS+3}, v{VS+4}, v{VS+5}")
        a(f"v_max3_f32 v{T}, v{T}, v{VS+6}, v{VS+7}")
        a(f"v_max3_f32 v{T}, v{T}, v{T+1}, v{VM}")
        xchg(a, T, T + 1, 16, "max")
        xchg(a, T, T + 1, 32, "max")
        a(f"v_sub_f32 v{VAL}, v{VM}, v{T}")
        a(f"v_mul_f32 v{VAL}, s87, v{VAL}")
        a(f"v_exp_f32 v{VAL}, v{VAL}")
        a(f"v_mov_b32 v{VM}, v{T}")
        a(f"v_mul_f32 v{T+1}, s87, v{T}")
        for x in range(8):
            a(f"v_fma_f32 v{VS+x}, v{VS+x}, s87, -v{T+1}")
        for x in range(8):
            a(f"v_exp_f32 v{VS+x}, v{VS+x}")
        a(f"v_cmp_neq_f32 vcc, 1.0, v{VAL}")
        a(f"v_mul_f32 v{VL}, v{VL}, v{VAL}")
        for x in range(4):
            a(f"v_cvt_pk_bf16_f32 v{VP+x}, v{VS+2*x}, v{VS+2*x+1}")
        a(f"v_add_f32 v{T}, v{VS}, v{VS+1}")
        a(f"v_add_f32 v{T+1}, v{VS+2}, v{VS+3}")
        a(f"v_add_f32 v{T+2}, v{VS+4}, v{VS+5}")
        a(f"v_add_f32 v{T+3}, v{VS+6}, v{VS+7}")
        a(f"v_add_f32 v{T}, v{T}, v{T+1}")
        a(f"v_add_f32 v{T+2}, v{T+2}, v{T+3}")
        a(f"v_add_f32 v{T}, v{T}, v{T+2}")
        a(f"v_add_f32 v{VL}, v{VL}, v{T}")
        lab = a.label("attn_noscale")
        a(f"s_cbranch_vccz {lab}")
        for i in range(32):
            a(f"v_mul_f32 v{VACC+i}, v{VACC+i}, v{VAL}")
        a(f"{lab}:")
        a("s_waitcnt vmcnt(24)")
        for j in range(8):
            tb = VPT + 4 * (j & 1)
            perm_tile(a, VV + 32 * buf, tb, j, 82, 83)
            a("s_nop 1")
            a(f"v_mfma_f32_16x16x32_bf16 {vr(VACC+4*j,4)}, {vr(tb,4)}, {vr(VP,4)}, {vr(VACC+4*j,4)}")
        vloads(buf, 88)
    a("s_sub_u32 s81, s81, 1")
    a("s_cmp_lg_u32 s81, 0")
    a("s_cbranch_scc1 attn_loop")
    xchg(a, VL, VT0, 16)
    xchg(a, VL, VT0, 32)
    LO, LML = 0, 8192
    a("v_and_b32 v6, 15, v0")
    a("v_lshrrev_b32 v7, 4, v0")
    a("v_lshl_add_u32 v8, v6, 2, v7")
    a("v_lshlrev_b32 v8, 7, v8")
    a("s_lshl_b32 s72, s3, 10")
    a("v_add_u32 v8, s72, v8")
    a("s_lshl_b32 s72, s3, 4")
    a("v_lshl_add_u32 v9, v6, 3, s72")
    a(f"v_mov_b32 v10, v{VM}")
    a(f"v_mov_b32 v11, v{VL}")
    a("s_mov_b32 exec_lo, 0x00030003")
    a("s_mov_b32 exec_hi, 0x00030003")
    for j in range(8):
        a(f"ds_write_b128 v8, {vr(VACC+4*j,4)} offset:{LO+16*j}")
    a(f"ds_write_b64 v9, v[10:11] offset:{LML}")
    a("s_mov_b64 exec, -1")
    a("s_waitcnt lgkmcnt(0)")
    a("s_barrier")
    a("s_cmp_lt_u32 s3, 4")
    a("s_cbranch_scc0 attn_end")
    a("s_and_b32 s72, s3, 1")
    a("s_lshl_b32 s72, s72, 6")
    a("v_add_u32 v6, s72, v0")
    a("v_lshrrev_b32 v7, 5, v6")
    a("v_bfe_u32 v8, v6, 3, 2")
    a("v_and_b32 v9, 7, v6")
    a("v_lshlrev_b32 v7, 5, v7")
    a("v_lshl_add_u32 v7, v9, 2, v7")
    a("v_add_u32 v7, v7, v8")
    a("s_lshr_b32 s84, s3, 1")
    a("s_lshl_b32 s72, s84, 9")
    a("v_lshl_add_u32 v7, v7, 2, s72")
    a("s_lshl_b32 s72, s84, 3")
    a("v_mov_b32 v8, s72")
    for w in range(8):
        a(f"ds_read_b32 v{16+w}, v7 offset:{LO+1024*w}")
        a(f"ds_read_b64 v[{24+2*w}:{25+2*w}], v8 offset:{LML+16*w}")
    a("s_waitcnt lgkmcnt(0)")
    a("v_max3_f32 v10, v24, v26, v28")
    a("v_max3_f32 v10, v10, v30, v32")
    a("v_max3_f32 v10, v10, v34, v36")
    a("v_max_f32 v10, v10, v38")
    for w in range(8):
        a(f"v_sub_f32 v{24+2*w}, v{24+2*w}, v10")
        a(f"v_mul_f32 v{24+2*w}, s87, v{24+2*w}")
        a(f"v_exp_f32 v{24+2*w}, v{24+2*w}")
    a("s_nop 0")
    a("v_mul_f32 v12, v16, v24")
    a("v_mul_f32 v14, v25, v24")
    for w in range(1, 8):
        a(f"v_fmac_f32 v12, v{16+w}, v{24+2*w}")
        a(f"v_fmac_f32 v14, v{25+2*w}, v{24+2*w}")
    a("v_mov_b32 v13, 0x1234")
    a("v_mov_b32 v11, 0x1234")
    a("v_mov_b32 v15, 0x1234")
    a("v_mov_b32 v16, v10")
    a("v_mov_b32 v17, v11")
    a("v_mov_b32 v18, v14")
    a("v_mov_b32 v19, v11")
    a(f"s_mul_i32 s72, s2, {PART_STRIDE}")
    a(f"s_add_u32 s72, s72, {WS_PART}")
    a("s_lshl_b32 s85, s84, 10")
    a("v_lshl_add_u32 v6, v6, 3, s85")
    a(f"buffer_store_dwordx2 v[12:13], v6, s[{SWS}:{SWS+3}], s72 offen")
    a("s_lshl_b32 s85, s84, 4")
    a("v_mov_b32 v7, s85")
    a("s_mov_b64 exec, 1")
    a(f"buffer_store_dwordx4 v[16:19], v7, s[{SWS}:{SWS+3}], s72 offen offset:2048")
    a("attn_end:")
    a("s_endpgm")
    return name, NV + 64, NV, "grid=(256,1,1) block=(512,1,1) lds=8448"

def k_comb(a):
    name = "comb_kernel"
    a.kernel_begin(name)
    prologue(a, 32, "comb_end")
    LZ = 0
    a(f"s_mov_b32 s87, {f32(LOG2E)}")
    a("s_mov_b32 s82, 0x05040100")
    a("s_mov_b32 s83, 0x07060302")
    a("v_lshrrev_b32 v44, 4, v0")
    a("v_and_b32 v45, 15, v0")
    VW = 64
    a("s_cmp_lt_u32 s3, 5")
    a("s_cbranch_scc0 comb_noload")
    a("s_lshl_b32 s72, s2, 7")
    a("v_lshl_add_u32 v46, v44, 3, s72")
    a("v_mul_u32_u24 v46, 1152, v46")
    a("s_lshl_b32 s72, s3, 4")
    a("v_add_u32 v47, s72, v45")
    a("v_lshl_add_u32 v46, v47, 4, v46")
    a("v_cmp_lt_u32 vcc, 71, v47")
    a("v_mov_b32 v47, 0x40000000")
    a("s_nop 0")
    a("v_cndmask_b32 v46, v46, v47, vcc")
    for ks in range(4):
        for i in range(8):
            r = VW + 32 * ks + 4 * i
            a(f"s_mov_b32 s72, {1152*(32*ks+i)}")
            a(f"buffer_load_dwordx4 v[{r}:{r+3}], v46, s[{SWO}:{SWO+3}], s72 offen nt")
    a("comb_noload:")
    a("s_cmp_ge_u32 s3, 4")
    a("s_cbranch_scc0 comb_nogather")
    a("s_sub_u32 s73, s3, 4")
    a("s_lshr_b32 s74, s73, 1")
    a("s_and_b32 s75, s73, 1")
    a("s_lshl_b32 s75, s75, 6")
    a("v_add_u32 v6, s75, v0")
    a("s_lshr_b32 s76, s2, 1")
    a("s_and_b32 s77, s2, 1")
    a("s_lshl_b32 s78, s74, 4")
    a("s_add_u32 s78, s78, s76")
    a(f"s_mul_i32 s78, s78, {8*PART_STRIDE}")
    a(f"s_add_u32 s78, s78, {WS_PART}")
    a("s_lshl_b32 s79, s77, 10")
    a("v_lshl_add_u32 v7, v6, 3, s79")
    a("s_lshl_b32 s79, s77, 4")
    a("s_add_u32 s79, s79, 2048")
    a("v_mov_b32 v8, s79")
    for s in range(8):
        a(f"buffer_load_dwordx2 v[{10+2*s}:{11+2*s}], v7, s[{SWS}:{SWS+3}], s78 offen")
        a(f"buffer_load_dwordx4 v[{28+4*s}:{31+4*s}], v8, s[{SWS}:{SWS+3}], s78 offen")
        if s < 7:
            a(f"s_add_u32 s78, s78, {PART_STRIDE}")
    a("s_waitcnt vmcnt(0)")
    a("v_max3_f32 v2, v28, v32, v36")
    a("v_max3_f32 v2, v2, v40, v44")
    a("v_max3_f32 v2, v2, v48, v52")
    a("v_max_f32 v2, v2, v56")
    for s in range(8):
        a(f"v_sub_f32 v{28+4*s}, v{28+4*s}, v2")
        a(f"v_mul_f32 v{28+4*s}, s87, v{28+4*s}")
        a(f"v_exp_f32 v{28+4*s}, v{28+4*s}")
    a("s_nop 0")
    a("v_mul_f32 v3, v10, v28")
    a("v_mul_f32 v4, v30, v28")
    for s in range(1, 8):
        a(f"v_fmac_f32 v3, v{10+2*s}, v{28+4*s}")
        a(f"v_fmac_f32 v4, v{30+4*s}, v{28+4*s}")
    a("v_rcp_f32 v5, v4")
    a("s_nop 0")
    a("v_mul_f32 v9, v3, v5")
    a("v_fma_f32 v3, -v9, v4, v3")
    a("v_fma_f32 v3, v3, v5, v9")
    a("v_cvt_pk_bf16_f32 v3, v3, v3")
    a("s_lshl_b32 s79, s74, 8")
    a("v_lshl_add_u32 v6, v6, 1, s79")
    a(f"ds_write_b16 v6, v3 offset:{LZ}")
    a("v_lshrrev_b32 v44, 4, v0")
    a("v_and_b32 v45, 15, v0")
    a("s_waitcnt lgkmcnt(0)")
    a("comb_nogather:")
    a("s_barrier")
    a("s_cmp_lt_u32 s3, 5")
    a("s_cbranch_scc0 comb_end")
    a("v_and_b32 v2, 1, v0")
    a("v_lshlrev_b32 v2, 8, v2")
    a("v_lshl_add_u32 v2, v44, 4, v2")
    a("v_lshrrev_b32 v4, 1, v45")
    a("s_waitcnt vmcnt(0)")
    for ks in range(4):
        a(f"ds_read_b128 v[8:11], v2 offset:{LZ + 64*ks}")
        a("s_waitcnt lgkmcnt(0)")
        zvariants(a, 8, 192, 4, 84)
        for j in range(8):
            tb = 16 + 4 * (j & 1)
            perm_tile(a, VW + 32 * ks, tb, j, 82, 83)
            a("s_nop 1")
            c = "0" if (j == 0 and ks == 0) else "v[12:15]"
            a(f"v_mfma_f32_16x16x32_bf16 v[12:15], v[{192+4*j}:{195+4*j}], v[{tb}:{tb+3}], {c}")
    a("s_lshl_b32 s72, s3, 7")
    a("v_lshl_add_u32 v2, v45, 3, v44")
    a("v_add_u32 v2, s72, v2")
    a("v_cmp_gt_u32 vcc, 576, v2")
    a("v_lshlrev_b32 v2, 4, v2")
    a("s_mul_i32 s72, s2, 9216")
    a(f"s_add_u32 s72, s72, {WS_YP}")
    a("s_nop 7")
    a("v_mov_b32 v16, v12")
    a("v_mov_b32 v17, 0x1234")
    a("v_mov_b32 v18, v13")
    a("v_mov_b32 v19, 0x1234")
    a("v_mov_b32 v20, v14")
    a("v_mov_b32 v21, 0x1234")
    a("v_mov_b32 v22, v15")
    a("v_mov_b32 v23, 0x1234")
    a("s_and_saveexec_b64 s[84:85], vcc")
    a(f"buffer_store_dwordx4 v[16:19], v2, s[{SWS}:{SWS+3}], s72 offen")
    a(f"buffer_store_dwordx4 v[20:23], v2, s[{SWS}:{SWS+3}], s72 offen offset:64")
    a("comb_end:")
    a("s_endpgm")
    return name, 224, 224, "grid=(32,1,1) block=(512,1,1) lds=512"

def k_fin(a):
    name = "fin_kernel"
    a.kernel_begin(name)
    prologue(a, 36, "fin_end")
    a("s_lshl_b32 s72, s3, 2")
    a("v_lshrrev_b32 v2, 4, v0")
    a("v_add_u32 v2, s72, v2")
    a("v_and_b32 v3, 15, v0")
    a("s_lshl_b32 s73, s2, 4")
    a("v_add_u32 v3, s73, v3")
    a("s_mov_b32 s74, 73728")
    a("v_mul_lo_u32 v4, v2, s74")
    a("v_lshl_add_u32 v4, v3, 3, v4")
    for p in range(16):
        a(f"s_mov_b32 s72, {WS_FP + 4608*p}")
        a(f"buffer_load_dwordx2 v[{16+2*p}:{17+2*p}], v4, s[{SWS}:{SWS+3}], s72 offen")
    a("v_mul_u32_u24 v5, 18432, v2")
    a("v_lshl_add_u32 v5, v3, 4, v5")
    for p in range(2):
        a(f"s_mov_b32 s72, {WS_YP + 9216*p}")
        a(f"buffer_load_dwordx4 v[{48+4*p}:{51+4*p}], v5, s[{SWS}:{SWS+3}], s72 offen")
    a("s_waitcnt vmcnt(0)")
    for p in range(1, 16):
        a(f"v_add_f32 v16, v16, v{16+2*p}")
        a(f"v_add_f32 v17, v17, v{17+2*p}")
    a("v_add_f32 v18, v48, v52")
    a("v_add_f32 v19, v50, v54")
    for k in range(4):
        xchg(a, 16 + k, 6, 16)
        xchg(a, 16 + k, 6, 32)
    a("s_lshl_b32 s72, s3, 8")
    a("v_lshl_add_u32 v6, v0, 4, s72")
    a("s_mov_b64 exec, 0xffff")
    a("ds_write_b128 v6, v[16:19]")
    a("s_mov_b64 exec, -1")
    a("s_waitcnt lgkmcnt(0)")
    a("s_barrier")
    a("s_cmp_eq_u32 s3, 0")
    a("s_cbranch_scc0 fin_end")
    a("s_mov_b64 exec, 0xffff")
    a("v_lshlrev_b32 v6, 4, v0")
    for w in range(4):
        a(f"ds_read_b128 v[{16+4*w}:{19+4*w}], v6 offset:{256*w}")
    a("v_lshlrev_b32 v7, 1, v3")
    a(f"buffer_load_ushort v8, v7, s[{SX}:{SX+3}], 0 offen")
    a(f"buffer_load_ushort v9, v7, s[{SX}:{SX+3}], 0 offen offset:1152")
    a("s_waitcnt vmcnt(0) lgkmcnt(0)")
    for w in range(1, 4):
        for k in range(4):
            a(f"v_add_f32 v{16+k}, v{16+k}, v{16+4*w+k}")
    for k in range(4):
        bf16r(a, 16 + k)
    a("v_lshlrev_b32 v8, 16, v8")
    a("v_lshlrev_b32 v9, 16, v9")
    a("v_add_f32 v8, v8, v18")
    a("v_add_f32 v9, v9, v19")
    bf16r(a, 8); bf16r(a, 9)
    a("v_add_f32 v8, v8, v16")
    a("v_add_f32 v9, v9, v17")
    a("v_cvt_pk_bf16_f32 v8, v8, v8")
    a("v_cvt_pk_bf16_f32 v9, v9, v9")
    a(f"buffer_store_short v8, v7, s[{SOUT}:{SOUT+3}], 0 offen")
    a(f"buffer_store_short v9, v7, s[{SOUT}:{SOUT+3}], 0 offen offset:1152")
    a("fin_end:")
    a("s_endpgm")
    return name, 64, 64, "grid=(36,1,1) block=(256,1,1) lds=1024"

def main():
    a = Asm()
    infos = [k_prep(a), k_attn(a), k_comb(a), k_fin(a)]
    out = HEADER
    for name, nv, ao, launch in infos:
        out += f"; @launch kernel={name} {launch}\n"
    out += '.amdgcn_target "amdgcn-amd-amdhsa--gfx950"\n.text\n'
    out += a.text()
    k = Asm()
    k('.section .rodata,"a"')
    for name, nv, ao, launch in infos:
        k(".p2align 6")
        k.kd(name, nv, ao)
    out += k.text()
    open(sys.argv[1], "w").write(out)

if __name__ == "__main__":
    main()
```

```python
import sys, math, json
from asmlib import *

HEADER = open("parallel_sum__gqa_block_cached__geglu_ffn__decode.s.ref").read().split("; Override launch")[0]
NAME = "parallel_sum__gqa_block_cached__geglu_ffn__decode_kernel"
SX, SK, SV, SWQ, SWO, SWG, SWU, SWD, SOUT, SWS = 28, 32, 36, 40, 44, 48, 52, 56, 60, 64
LOG2E = 1.4426950408889634
SCALE = 128 ** -0.5
WS_EPOCH = 0
WS_QP   = 0x10000
WS_GP   = 0x50000
WS_PART = 0xC0000
PART_STRIDE = 2176
WS_YP   = 0x150000
WS_TS   = 0x200000
WS_SIZE = 0x400000
TAGC = 0x9E3779B9
OOB = 0x40000000
L_RED2 = 0
L_QL  = 6144
L_CNT = 6656
L_Z   = 6720
L_RED = 7424
L_XNB = L_RED + 4096
L_O   = 7424
L_ML  = L_O + 8192
L_BLK = 16384
LDS_SIZE = L_BLK + 147456
assert L_ML + 128 <= L_BLK and L_XNB + 2304 <= L_BLK and LDS_SIZE <= 163840
STAG = 90
SPIN_MAX = 1 << 20
NCOMB = 68
RED0, NRED = 128, 72
GU0 = 40

def rowsum16(a, v, op="add"):
    for m in ("quad_perm:[1,0,3,2]", "quad_perm:[2,3,0,1]", "row_half_mirror", "row_mirror"):
        a("s_nop 1")
        a(f"v_{op}_f32_dpp v{v}, v{v}, v{v} {m} row_mask:0xf bank_mask:0xf")

def xchg(a, v, t, which, op="add"):
    a(f"v_mov_b32 v{t}, v{v}")
    a("s_nop 1")
    a(f"v_permlane{which}_swap_b32 v{v}, v{t}")
    a("s_nop 1")
    a(f"v_{op}_f32 v{v}, v{v}, v{t}")

def bf16r(a, v):
    a(f"v_cvt_pk_bf16_f32 v{v}, v{v}, v{v}")
    a(f"v_and_b32 v{v}, 0xffff0000, v{v}")

def perm_tile(a, vsrc, vdst, j):
    w = j >> 1
    sel = 83 if (j & 1) else 82
    for x in range(4):
        a(f"v_perm_b32 v{vdst+x}, v{vsrc+(2*x+1)*4+w}, v{vsrc+(2*x)*4+w}, s{sel}")

def ln_compute(a, vx, vf, vt):
    for i in range(9):
        a(f"v_lshlrev_b32 v{vf+2*i}, 16, v{vx+i}")
        a(f"v_and_b32 v{vf+2*i+1}, 0xffff0000, v{vx+i}")
    s, t, m, q, sd, rs = vt, vt + 1, vt + 2, vt + 3, vt + 4, vt + 5
    a(f"v_add_f32 v{s}, v{vf}, v{vf+1}")
    a(f"v_add_f32 v{t}, v{vf+2}, v{vf+3}")
    for i in range(4, 18, 2):
        a(f"v_add_f32 v{s}, v{s}, v{vf+i}")
        a(f"v_add_f32 v{t}, v{t}, v{vf+i+1}")
    a(f"v_add_f32 v{s}, v{s}, v{t}")
    rowsum16(a, s)
    xchg(a, s, t, 16)
    a(f"v_mul_f32 v{m}, {f32(1.0/576)}, v{s}")
    a(f"v_sub_f32 v{t}, v{vf}, v{m}")
    a(f"v_sub_f32 v{s}, v{vf+1}, v{m}")
    a(f"v_mul_f32 v{q}, v{t}, v{t}")
    a(f"v_mul_f32 v{sd}, v{s}, v{s}")
    for i in range(2, 18, 2):
        a(f"v_sub_f32 v{t}, v{vf+i}, v{m}")
        a(f"v_sub_f32 v{s}, v{vf+i+1}, v{m}")
        a(f"v_fmac_f32 v{q}, v{t}, v{t}")
        a(f"v_fmac_f32 v{sd}, v{s}, v{s}")
    a(f"v_add_f32 v{q}, v{q}, v{sd}")
    rowsum16(a, q)
    xchg(a, q, t, 16)
    a(f"v_mul_f32 v{q}, {f32(1.0/576)}, v{q}")
    bf16r(a, m)
    bf16r(a, q)
    a(f"v_add_f32 v{q}, {f32(1e-5)}, v{q}")
    bf16r(a, q)
    a(f"v_sqrt_f32 v{sd}, v{q}")
    a("s_nop 0")
    bf16r(a, sd)
    a(f"v_rcp_f32 v{rs}, v{sd}")
    a(f"v_and_b32 v{s}, 31, v0")
    a(f"v_lshlrev_b32 v{s}, 2, v{s}")
    a(f"v_lshrrev_b32 v{t}, 5, v0")
    a(f"v_mul_u32_u24 v{t}, 1152, v{t}")
    a(f"v_add_u32 v{s}, v{s}, v{t}")
    for i in range(18):
        a(f"v_sub_f32 v{vf+i}, v{vf+i}, v{m}")
    for i in range(9):
        a(f"v_cvt_pk_bf16_f32 v{vx+i}, v{vf+2*i}, v{vf+2*i+1}")
    for i in range(9):
        lo, hi = vf + 2 * i, vf + 2 * i + 1
        a(f"v_lshlrev_b32 v{lo}, 16, v{vx+i}")
        a(f"v_and_b32 v{hi}, 0xffff0000, v{vx+i}")
        a(f"v_mul_f32 v{t}, v{lo}, v{rs}")
        a(f"v_mul_f32 v{q}, v{hi}, v{rs}")
        a(f"v_fma_f32 v{lo}, -v{t}, v{sd}, v{lo}")
        a(f"v_fma_f32 v{hi}, -v{q}, v{sd}, v{hi}")
        a(f"v_fma_f32 v{lo}, v{lo}, v{rs}, v{t}")
        a(f"v_fma_f32 v{hi}, v{hi}, v{rs}, v{q}")
        a(f"v_cvt_pk_bf16_f32 v{vx+i}, v{lo}, v{hi}")
        a(f"ds_write_b32 v{s}, v{vx+i} offset:{L_XNB + 128*i}")

def gen(rot=1, ts=False, sleep=1, th=4, sched="lds", xmap=0):
    a = Asm()
    a.kernel_begin(NAME)
    VTS = 159
    def stamp(i):
        if not ts: return
        a("s_memrealtime s[100:101]")
        a("s_waitcnt lgkmcnt(0)")
        a(f"v_writelane_b32 v{VTS}, s100, {i}")
    def poll_tail(lab_loop, lab_done, cnt):
        a("s_nop 3")
        a("s_cmp_eq_u64 s[92:93], 0")
        a(f"s_cbranch_scc1 {lab_done}")
        a(f"s_sub_u32 s{cnt}, s{cnt}, 1")
        a(f"s_cbranch_scc1 {lab_done}")
        if sleep: a(f"s_sleep {sleep}")
        a(f"s_branch {lab_loop}")
        a(f"{lab_done}:")
    def tagfold(regs, acc, tmp, first=True):
        for i, r in enumerate(regs):
            if i == 0 and first:
                a(f"v_xor_b32 v{acc}, s{STAG}, v{r}")
            else:
                a(f"v_xor_b32 v{tmp}, s{STAG}, v{r}")
                a(f"v_or_b32 v{acc}, v{acc}, v{tmp}")
        a(f"v_cmp_ne_u32 s[92:93], 0, v{acc}")
    def selmasks(vc, vt):
        for k, sp in ((2, 4), (4, 6), (8, 8)):
            a(f"v_and_b32 v{vt}, {k}, v{vc}")
            a(f"v_cmp_ne_u32 s[{sp}:{sp+1}], 0, v{vt}")
    def seltree(DA, dst, dstep):
        for k in range(4):
            for r in range(4):
                a(f"v_cndmask_b32 v{DA+8*k+r}, v{DA+8*k+r}, v{DA+8*k+4+r}, s[4:5]")
        for k in range(2):
            for r in range(4):
                a(f"v_cndmask_b32 v{DA+16*k+r}, v{DA+16*k+r}, v{DA+16*k+8+r}, s[6:7]")
        for r in range(4):
            a(f"v_cndmask_b32 v{dst+dstep*r}, v{DA+r}, v{DA+16+r}, s[8:9]")
    VOK, VOV = 1, 2
    VM, VL, VAL, VT0 = 3, 4, 5, 6
    VS, VP, VPT, VQ, VACC, VV = 16, 24, 28, 36, 52, 84
    VCA, VONE, VG, VC = 148, 149, 150, 151
    NV = 160
    AK = 0
    a("s_cmp_ge_u32 s2, 256")
    a("s_cbranch_scc1 L_end")
    a("s_load_dwordx16 s[4:19], s[0:1], 0")
    a("s_load_dwordx8 s[20:27], s[0:1], 64")
    a("v_lshrrev_b32 v1, 6, v0")
    a("v_and_b32 v0, 63, v0")
    a("v_readfirstlane_b32 s3, v1")
    if ts: a(f"v_mov_b32 v{VTS}, 0")
    stamp(0)
    a("s_lshr_b32 s73, s2, 2")
    a("s_and_b32 s74, s2, 3")
    a("s_mul_i32 s75, s74, 144")
    a("s_mul_i32 s72, s3, 18")
    a("s_add_u32 s75, s75, s72")
    a("v_lshrrev_b32 v152, 3, v0")
    a("v_add_u32 v153, s75, v152")
    a("v_and_b32 v6, 7, v0")
    a("v_lshlrev_b32 v6, 4, v6")
    a("v_lshl_add_u32 v154, v153, 13, v6")
    a("v_cmp_gt_u32 vcc, 2, v152")
    a(f"v_mov_b32 v155, {OOB}")
    a("s_lshl_b32 s76, s73, 7")
    a("v_cndmask_b32 v155, v155, v154, vcc")
    a("s_add_u32 s77, s76, 65536")
    a("s_add_u32 s78, s76, 131072")
    a("v_lshrrev_b32 v6, 5, v0")
    a("v_mul_u32_u24 v6, 1152, v6")
    a("v_and_b32 v7, 31, v0")
    a("v_lshl_add_u32 v6, v7, 2, v6")
    a("s_waitcnt lgkmcnt(0)")
    a(f"s_load_dword s{STAG}, s[26:27], {WS_EPOCH}")
    a.srd(SX, 4, 2304)
    a.srd(SWQ, 10, 576 * 4096 * 2)
    VX, VF, VLT = 116, 126, 8
    VW = 36
    a("s_cmp_eq_u32 s3, 0")
    a("s_cbranch_scc0 L_nox")
    for i in range(9):
        a(f"buffer_load_dword v{VX+i}, v6, s[{SX}:{SX+3}], 0 offen offset:{128*i}")
    a("L_nox:")
    a(f"buffer_load_dwordx4 v[{VW}:{VW+3}], v154, s[{SWQ}:{SWQ+3}], s76 offen nt")
    a(f"buffer_load_dwordx4 v[{VW+4}:{VW+7}], v154, s[{SWQ}:{SWQ+3}], s77 offen nt")
    a(f"buffer_load_dwordx4 v[{VW+8}:{VW+11}], v155, s[{SWQ}:{SWQ+3}], s78 offen nt")
    a.srd(SK, 6, 1 << 28)
    a.srd(SV, 8, 1 << 28)
    a.srd(SWG, 16, 576 * 4608 * 2)
    a.srd(SWU, 18, 576 * 4608 * 2)
    a.srd(SWO, 12, 4096 * 576 * 2)
    a.srd(SWD, 20, 4608 * 576 * 2)
    a.srd(SOUT, 22, 2304)
    a.srd(SWS, 26, WS_SIZE)
    if xmap == 0:
        a("s_lshr_b32 s84, s2, 3")
        a("s_and_b32 s85, s2, 7")
    else:
        a("s_and_b32 s84, s2, 7")
        a("s_lshl_b32 s84, s84, 2")
        a("s_lshr_b32 s72, s2, 6")
        a("s_add_u32 s84, s84, s72")
        a("s_lshr_b32 s85, s2, 3")
        a("s_and_b32 s85, s85, 7")
    a("s_lshl_b32 s81, s84, 3")
    a("s_add_u32 s81, s81, s85")
    a("s_lshl_b32 s88, s85, 16")
    a("s_lshl_b32 s72, s84, 23")
    a("s_add_u32 s88, s88, s72")
    a(f"s_mul_i32 s89, s84, {rot}")
    a("s_mov_b32 s82, 0x05040100")
    a("s_mov_b32 s83, 0x07060302")
    a(f"s_mov_b32 s86, {f32(SCALE)}")
    a(f"s_mov_b32 s87, {f32(LOG2E)}")
    a(f"v_lshrrev_b32 v{VG}, 4, v0")
    a(f"v_and_b32 v{VC}, 15, v0")
    a("v_and_b32 v6, 3, v0")
    a("v_lshlrev_b32 v6, 2, v6")
    a("v_bfe_u32 v7, v0, 2, 2")
    a("v_add_u32 v6, v6, v7")
    a("v_lshlrev_b32 v6, 8, v6")
    a(f"v_lshl_add_u32 v{VOK}, v{VG}, 4, v6")
    a(f"v_lshlrev_b32 v{VOV}, 4, v0")
    a(f"v_mov_b32 v{VCA}, {L_CNT}")
    a(f"v_mov_b32 v{VONE}, 1")
    def tile_off(buf):
        su, so = 98 + buf, 94 + 2 * buf
        a(f"s_lshr_b32 s72, s{su}, 3")
        a("s_add_u32 s72, s72, s89")
        a("s_and_b32 s72, s72, 15")
        a("s_lshl_b32 s72, s72, 19")
        a(f"s_and_b32 s91, s{su}, 7")
        a("s_lshl_b32 s91, s91, 13")
        a("s_add_u32 s72, s72, s91")
        a("s_add_u32 s72, s72, s88")
        a(f"s_cmp_lt_u32 s{su}, 128")
        a(f"s_cselect_b32 s{so}, s72, {OOB}")
        a(f"s_add_u32 s{so+1}, s{so}, 4096")
    def kloads(buf):
        for t in range(2):
            for s in range(4):
                r = AK + 32 * buf + 16 * t + 4 * s
                a(f"buffer_load_dwordx4 a[{r}:{r+3}], v{VOK}, s[{SK}:{SK+3}], s{94+2*buf+t} offen offset:{64*s} nt")
    def vloads(buf):
        for i in range(8):
            r = VV + 32 * buf + 4 * i
            a(f"buffer_load_dwordx4 v[{r}:{r+3}], v{VOV}, s[{SV}:{SV+3}], s{94+2*buf+i//4} offen offset:{1024*(i%4)} nt")
    def dma_block(throttle):
        l1, l2 = a.label("L_dma_wd"), a.label("L_nodma")
        a(f"s_cmp_lt_u32 s2, {NCOMB}")
        a(f"s_cbranch_scc0 {l2}")
        a("s_mul_i32 s72, s3, 18432")
        a("s_cmp_lt_u32 s2, 32")
        a(f"s_cbranch_scc0 {l1}")
        for which in (0, 1):
            srd = SWO if which == 0 else SWD
            if which == 1:
                a(f"{l1}:")
                a("s_sub_u32 s91, s2, 32")
                a("s_mul_i32 s91, s91, 147456")
            else:
                a("s_mul_i32 s91, s2, 147456")
            a("s_add_u32 s91, s91, s72")
            for i in range(18):
                if i % 4 == 0:
                    if throttle is not None and i % 8 == 0: a(f"s_waitcnt vmcnt({throttle})")
                    a(f"s_add_u32 m0, s72, {L_BLK + 1024*i}")
                    a(f"s_add_u32 s78, s91, {1024*i}")
                a(f"buffer_load_dwordx4 v{VOV}, s[{srd}:{srd+3}], s78 offen offset:{1024*(i%4)} nt lds")
            if which == 0:
                a(f"s_branch {l2}")
        a(f"{l2}:")
    if sched == "lds":
        a("s_sub_u32 s98, s3, 1")
        a("s_add_u32 s99, s3, 6")
    else:
        a("s_mov_b32 s98, s3")
        a("s_add_u32 s99, s3, 8")
    a("s_cmp_eq_u32 s3, 0")
    a("s_cbranch_scc1 L_w0_ln")
    tile_off(0)
    kloads(0)
    a("s_branch L_A0")
    a("L_w0_ln:")
    a("s_waitcnt vmcnt(3)")
    stamp(1)
    ln_compute(a, VX, VF, VLT)
    a("v_mov_b32 v6, 14")
    a(f"ds_write_b32 v{VCA}, v6")
    a("s_waitcnt vmcnt(0) lgkmcnt(0)")
    a("L_A0:")
    a("v_add_u32 v6, 8, v153")
    a("v_add_u32 v7, 16, v153")
    a("v_min_u32 v7, 575, v7")
    a("v_lshlrev_b32 v153, 1, v153")
    a("v_lshlrev_b32 v6, 1, v6")
    a("v_lshlrev_b32 v7, 1, v7")
    a("s_barrier")
    XR = 8
    for i, r in enumerate((153, 6, 7)):
        a(f"ds_read_u16 v{XR+2*i}, v{r} offset:{L_XNB}")
        a(f"ds_read_u16 v{XR+2*i+1}, v{r} offset:{L_XNB+1152}")
    a("s_waitcnt lgkmcnt(0)")
    a(f"s_add_u32 s{STAG}, s{STAG}, {TAGC:#x}")
    for i in range(6):
        a(f"v_lshlrev_b32 v{XR+i}, 16, v{XR+i}")
    a("s_waitcnt vmcnt(8)")
    QA = 16
    for i in range(3):
        for w in range(4):
            a(f"v_lshlrev_b32 v14, 16, v{VW+4*i+w}")
            a(f"v_and_b32 v15, 0xffff0000, v{VW+4*i+w}")
            op = "v_mul_f32" if i == 0 else "v_fmac_f32"
            a(f"{op} v{QA+2*w}, v14, v{XR+2*i}")
            a(f"{op} v{QA+2*w+1}, v15, v{XR+2*i}")
            a(f"{op} v{QA+8+2*w}, v14, v{XR+2*i+1}")
            a(f"{op} v{QA+8+2*w+1}, v15, v{XR+2*i+1}")
    a("s_nop 1")
    for k in range(8):
        a(f"v_permlane32_swap_b32 v{QA+k}, v{QA+8+k}")
    a("s_nop 1")
    for k in range(8):
        a(f"v_add_f32 v{QA+k}, v{QA+k}, v{QA+8+k}")
    a("s_nop 1")
    for k in range(4):
        a(f"v_permlane16_swap_b32 v{QA+k}, v{QA+4+k}")
    a("s_nop 1")
    for k in range(4):
        a(f"v_add_f32 v{QA+k}, v{QA+k}, v{QA+4+k}")
    a("s_nop 1")
    for k in range(4):
        a(f"v_add_f32_dpp v{QA+k}, v{QA+k}, v{QA+k} row_ror:8 row_mask:0xf bank_mask:0xf")
    a("v_lshrrev_b32 v6, 5, v0")
    a("v_lshlrev_b32 v6, 8, v6")
    a("v_and_b32 v7, 7, v0")
    a("v_lshl_add_u32 v6, v7, 5, v6")
    a("v_bfe_u32 v7, v0, 4, 1")
    a("v_lshl_add_u32 v6, v7, 4, v6")
    a("s_lshl_b32 s72, s3, 9")
    a("v_add_u32 v6, s72, v6")
    a(f"ds_write_b128 v6, v[{QA}:{QA+3}] offset:{L_RED}")
    a("s_waitcnt lgkmcnt(0)")
    a("s_barrier")
    stamp(2)
    a("s_cmp_eq_u32 s3, 0")
    a("s_cbranch_scc0 L_prefetch")
    a("v_lshlrev_b32 v6, 3, v0")
    for w in range(8):
        a(f"ds_read_b64 v[{16+2*w}:{17+2*w}], v6 offset:{L_RED + 512*w}")
    a("v_lshrrev_b32 v6, 5, v0")
    a("v_lshlrev_b32 v6, 15, v6")
    a("v_and_b32 v7, 31, v0")
    a("v_lshl_add_u32 v6, v7, 4, v6")
    a("s_lshl_b32 s72, s74, 16")
    a("s_lshl_b32 s91, s73, 9")
    a("s_add_u32 s72, s72, s91")
    a(f"s_add_u32 s72, s72, {WS_QP}")
    a(f"v_mov_b32 v9, s{STAG}")
    a(f"v_mov_b32 v11, s{STAG}")
    a("s_waitcnt lgkmcnt(0)")
    a("v_add_f32 v8, v16, v18")
    a("v_add_f32 v10, v17, v19")
    for w in range(2, 8):
        a(f"v_add_f32 v8, v8, v{16+2*w}")
        a(f"v_add_f32 v10, v10, v{17+2*w}")
    a(f"buffer_store_dwordx4 v[8:11], v6, s[{SWS}:{SWS+3}], s72 offen sc1")
    stamp(3)
    a("s_lshr_b32 s72, s84, 4")
    a("s_lshl_b32 s72, s72, 15")
    a("s_and_b32 s91, s84, 15")
    a("s_lshl_b32 s91, s91, 11")
    a("s_add_u32 s72, s72, s91")
    a(f"s_add_u32 s76, s72, {WS_QP}")
    for rb in range(1, 4):
        a(f"s_add_u32 s{76+rb}, s76, {65536*rb}")
    a(f"s_mov_b32 s91, {SPIN_MAX}")
    PB = 16
    a("L_pollq:")
    for rb in range(4):
        for h in range(2):
            r = PB + 8 * rb + 4 * h
            a(f"buffer_load_dwordx4 v[{r}:{r+3}], v{VOV}, s[{SWS}:{SWS+3}], s{76+rb} offen offset:{1024*h} sc1")
    a("s_waitcnt vmcnt(0)")
    tagfold([PB + 4*i + k for i in range(8) for k in (1, 3)], 9, 10)
    poll_tail("L_pollq", "L_pollq_done", 91)
    for h in range(2):
        for k in (0, 2):
            r = PB + 4 * h + k
            a(f"v_add_f32 v{r}, v{r}, v{r+8}")
            a(f"v_add_f32 v{r+16}, v{r+16}, v{r+24}")
            a(f"v_add_f32 v{r}, v{r}, v{r+16}")
        a(f"v_cvt_pk_bf16_f32 v{8+h}, v{PB+4*h}, v{PB+4*h+2}")
    a("v_lshlrev_b32 v6, 2, v0")
    a(f"ds_write_b32 v6, v8 offset:{L_QL}")
    a(f"ds_write_b32 v6, v9 offset:{L_QL+256}")
    a("s_waitcnt lgkmcnt(0)")
    a("s_branch L_B")
    a("L_prefetch:")
    a(f"s_sub_u32 s73, s2, {GU0}")
    a("s_mul_i32 s74, s73, 171")
    a("s_lshr_b32 s74, s74, 9")
    a("s_mul_i32 s72, s74, 3")
    a("s_sub_u32 s75, s73, s72")
    a(f"s_cmp_ge_u32 s2, {GU0}")
    a("s_cselect_b32 s79, 1, 0")
    a("s_cmp_lt_u32 s3, 7")
    a("s_cselect_b32 s79, s79, 0")
    a("s_cmp_eq_u32 s79, 0")
    a("s_cbranch_scc1 L_nogu1")
    a("s_mul_i32 s76, s75, 192")
    a("s_lshl_b32 s72, s3, 5")
    a("s_add_u32 s76, s76, s72")
    a("s_sub_u32 s76, s76, 32")
    a(f"v_lshl_add_u32 v6, v{VG}, 3, s76")
    a("v_mul_u32_u24 v7, 9216, v6")
    a(f"v_lshl_add_u32 v7, v{VC}, 4, v7")
    a("s_lshr_b32 s77, s74, 1")
    a("s_lshl_b32 s77, s77, 8")
    a("v_and_b32 v8, 1, v0")
    a("v_mul_u32_u24 v8, 1152, v8")
    a("v_lshl_add_u32 v8, v6, 1, v8")
    a(f"ds_read_b128 v[12:15], v8 offset:{L_XNB}")
    a(f"s_waitcnt vmcnt({th})")
    a("s_bitcmp1_b32 s74, 0")
    a("s_cbranch_scc1 L_gu_up")
    for which, srd in ((0, SWG), (1, SWU)):
        if which: a("L_gu_up:")
        for i in range(8):
            a(f"buffer_load_dwordx4 v[{VACC+4*i}:{VACC+4*i+3}], v7, s[{srd}:{srd+3}], s77 offen nt")
            if i < 7: a("s_add_u32 s77, s77, 9216")
        if not which: a("s_branch L_nogu1")
    a("L_nogu1:")
    a(f"s_waitcnt vmcnt({th})")
    vloads(0)
    a("s_cmp_eq_u32 s79, 0")
    a("s_cbranch_scc1 L_nogu2")
    selmasks(VC, 6)
    a("s_waitcnt vmcnt(8) lgkmcnt(0)")
    DA = 16
    for j in range(8):
        tb = 8 if (j & 1) else 48
        perm_tile(a, VACC, tb, j)
        a("s_nop 1")
        a(f"v_mfma_f32_16x16x32_bf16 {vr(DA+4*j,4)}, {vr(tb,4)}, v[12:15], 0")
    a("s_lshl_b32 s72, s3, 10")
    a(f"v_add_u32 v6, s72, v{VOV}")
    a("s_nop 7")
    seltree(DA, 8, 1)
    a(f"ds_write_b128 v6, v[8:11] offset:{L_RED2 - 1024}") if L_RED2 >= 1024 else None
    if L_RED2 < 1024:
        a("v_subrev_u32 v6, 1024, v6")
        a(f"ds_write_b128 v6, v[8:11] offset:{L_RED2}")
    a("L_nogu2:")
    a(f"s_waitcnt vmcnt({th})")
    tile_off(1)
    kloads(1)
    a(f"s_waitcnt vmcnt({th})")
    vloads(1)
    dma_block(th)
    a("s_waitcnt lgkmcnt(0)")
    stamp(3)
    a("L_B:")
    a("s_barrier")
    stamp(4)
    a("v_and_b32 v6, 1, v0")
    a("v_lshlrev_b32 v6, 8, v6")
    a(f"v_lshl_add_u32 v6, v{VG}, 4, v6")
    for s in range(4):
        a(f"ds_read_b128 v[{VQ+4*s}:{VQ+4*s+3}], v6 offset:{L_QL + 64*s}")
    a("s_cmp_eq_u32 s3, 0")
    a("s_cbranch_scc0 L_w0_done")
    if sched == "lds":
        a("s_mov_b64 exec, 1")
        a("v_mov_b32 v14, 2")
        a(f"ds_add_rtn_u32 v15, v{VCA}, v14")
        a("s_mov_b64 exec, -1")
        a("s_waitcnt lgkmcnt(0)")
        a("v_readfirstlane_b32 s98, v15")
        a("s_nop 3")
        a("s_add_u32 s99, s98, 1")
    tile_off(0)
    kloads(0)
    vloads(0)
    tile_off(1)
    kloads(1)
    vloads(1)
    dma_block(None)
    a("L_w0_done:")
    a("s_cmp_eq_u32 s3, 7")
    a("s_cbranch_scc0 L_nogu3")
    a(f"s_cmp_ge_u32 s2, {GU0}")
    a("s_cbranch_scc0 L_nogu3")
    for w in range(6):
        a(f"ds_read_b128 v[{VACC+4*w}:{VACC+4*w+3}], v{VOV} offset:{L_RED2 + 1024*w}")
    a(f"v_lshlrev_b32 v6, 9, v{VG}")
    a(f"v_lshl_add_u32 v6, v{VC}, 3, v6")
    a("s_lshl_b32 s72, s73, 11")
    a(f"s_add_u32 s72, s72, {WS_GP}")
    a("s_waitcnt lgkmcnt(0)")
    for w in range(1, 6):
        for r in range(4):
            a(f"v_add_f32 v{VACC+r}, v{VACC+r}, v{VACC+4*w+r}")
    for r in range(4):
        a(f"v_mov_b32 v{8+2*r}, v{VACC+r}")
        a(f"v_mov_b32 v{9+2*r}, s{STAG}")
    for r in range(4):
        a(f"buffer_store_dwordx2 v[{8+2*r}:{9+2*r}], v6, s[{SWS}:{SWS+3}], s72 offen offset:{128*r} sc1")
    a("L_nogu3:")
    for i in range(32):
        a(f"v_mov_b32 v{VACC+i}, 0")
    a(f"v_mov_b32 v{VM}, 0xf149f2ca")
    a(f"v_mov_b32 v{VL}, 0")
    a("s_waitcnt lgkmcnt(0)")
    a("L_loop:")
    for buf in range(2):
        a(f"s_cmp_ge_u32 s{98+buf}, 128")
        a("s_cbranch_scc1 L_loop_done")
        if sched == "lds":
            a("s_mov_b64 exec, 1")
            a(f"ds_add_rtn_u32 v15, v{VCA}, v{VONE}")
            a("s_mov_b64 exec, -1")
        a("s_waitcnt vmcnt(24)")
        for s in range(4):
            for t in range(2):
                r = AK + 32 * buf + 16 * t + 4 * s
                c = "0" if s == 0 else vr(VS + 4 * t, 4)
                a(f"v_mfma_f32_16x16x32_bf16 {vr(VS+4*t,4)}, a[{r}:{r+3}], {vr(VQ+4*s,4)}, {c}")
        if sched == "lds":
            a("s_waitcnt lgkmcnt(0)")
            a(f"v_readfirstlane_b32 s{98+buf}, v15")
            a("s_nop 3")
        else:
            a(f"s_add_u32 s{98+buf}, s{98+buf}, 16")
        tile_off(buf)
        kloads(buf)
        T = VT0
        for x in range(4):
            a(f"v_cvt_pk_bf16_f32 v{T+x}, v{VS+2*x}, v{VS+2*x+1}")
        for x in range(4):
            a(f"v_lshlrev_b32 v{VS+2*x}, 16, v{T+x}")
            a(f"v_and_b32 v{VS+2*x+1}, 0xffff0000, v{T+x}")
        for x in range(8):
            a(f"v_mul_f32 v{VS+x}, s86, v{VS+x}")
        for x in range(4):
            a(f"v_cvt_pk_bf16_f32 v{T+x}, v{VS+2*x}, v{VS+2*x+1}")
        for x in range(4):
            a(f"v_lshlrev_b32 v{VS+2*x}, 16, v{T+x}")
            a(f"v_and_b32 v{VS+2*x+1}, 0xffff0000, v{T+x}")
        a(f"v_max3_f32 v{T}, v{VS}, v{VS+1}, v{VS+2}")
        a(f"v_max3_f32 v{T+1}, v{VS+3}, v{VS+4}, v{VS+5}")
        a(f"v_max3_f32 v{T}, v{T}, v{VS+6}, v{VS+7}")
        a(f"v_max3_f32 v{T}, v{T}, v{T+1}, v{VM}")
        xchg(a, T, T + 1, 16, "max")
        xchg(a, T, T + 1, 32, "max")
        a(f"v_sub_f32 v{VAL}, v{VM}, v{T}")
        a(f"v_mul_f32 v{VAL}, s87, v{VAL}")
        a(f"v_exp_f32 v{VAL}, v{VAL}")
        a(f"v_mov_b32 v{VM}, v{T}")
        a(f"v_mul_f32 v{T+1}, s87, v{T}")
        for x in range(8):
            a(f"v_fma_f32 v{VS+x}, v{VS+x}, s87, -v{T+1}")
        for x in range(8):
            a(f"v_exp_f32 v{VS+x}, v{VS+x}")
        a(f"v_cmp_neq_f32 vcc, 1.0, v{VAL}")
        a(f"v_mul_f32 v{VL}, v{VL}, v{VAL}")
        for x in range(4):
            a(f"v_cvt_pk_bf16_f32 v{VP+x}, v{VS+2*x}, v{VS+2*x+1}")
        a(f"v_add_f32 v{T}, v{VS}, v{VS+1}")
        a(f"v_add_f32 v{T+1}, v{VS+2}, v{VS+3}")
        a(f"v_add_f32 v{T+2}, v{VS+4}, v{VS+5}")
        a(f"v_add_f32 v{T+3}, v{VS+6}, v{VS+7}")
        a(f"v_add_f32 v{T}, v{T}, v{T+1}")
        a(f"v_add_f32 v{T+2}, v{T+2}, v{T+3}")
        a(f"v_add_f32 v{T}, v{T}, v{T+2}")
        a(f"v_add_f32 v{VL}, v{VL}, v{T}")
        lab = a.label("L_noscale")
        a(f"s_cbranch_vccz {lab}")
        for i in range(32):
            a(f"v_mul_f32 v{VACC+i}, v{VACC+i}, v{VAL}")
        a(f"{lab}:")
        a("s_waitcnt vmcnt(24)")
        for j in range(8):
            tb = VPT + 4 * (j & 1)
            perm_tile(a, VV + 32 * buf, tb, j)
            a("s_nop 1")
            a(f"v_mfma_f32_16x16x32_bf16 {vr(VACC+4*j,4)}, {vr(tb,4)}, {vr(VP,4)}, {vr(VACC+4*j,4)}")
        vloads(buf)
    a("s_branch L_loop")
    a("L_loop_done:")
    stamp(5)
    xchg(a, VL, VT0, 16)
    xchg(a, VL, VT0, 32)
    a(f"v_lshl_add_u32 v8, v{VC}, 2, v{VG}")
    a("v_lshlrev_b32 v8, 7, v8")
    a("s_lshl_b32 s72, s3, 10")
    a("v_add_u32 v8, s72, v8")
    a("s_lshl_b32 s72, s3, 4")
    a(f"v_lshl_add_u32 v9, v{VC}, 3, s72")
    a(f"v_mov_b32 v10, v{VM}")
    a(f"v_mov_b32 v11, v{VL}")
    a("s_mov_b32 exec_lo, 0x00030003")
    a("s_mov_b32 exec_hi, 0x00030003")
    for j in range(8):
        a(f"ds_write_b128 v8, {vr(VACC+4*j,4)} offset:{L_O+16*j}")
    a(f"ds_write_b64 v9, v[10:11] offset:{L_ML}")
    a("s_mov_b64 exec, -1")
    a("s_waitcnt vmcnt(0) lgkmcnt(0)")
    a("s_barrier")
    stamp(6)
    a("s_cmp_lt_u32 s3, 4")
    a("s_cbranch_scc0 L_nopub")
    a("s_and_b32 s72, s3, 1")
    a("s_lshl_b32 s72, s72, 6")
    a("v_add_u32 v6, s72, v0")
    a("v_lshrrev_b32 v7, 5, v6")
    a("v_bfe_u32 v8, v6, 3, 2")
    a("v_and_b32 v9, 7, v6")
    a("v_lshlrev_b32 v7, 5, v7")
    a("v_lshl_add_u32 v7, v9, 2, v7")
    a("v_add_u32 v7, v7, v8")
    a("s_lshr_b32 s91, s3, 1")
    a("s_lshl_b32 s72, s91, 9")
    a("v_lshl_add_u32 v7, v7, 2, s72")
    a("s_lshl_b32 s72, s91, 3")
    a("v_mov_b32 v8, s72")
    for w in range(8):
        a(f"ds_read_b64 v[{24+2*w}:{25+2*w}], v8 offset:{L_ML+16*w}")
    for w in range(8):
        a(f"ds_read_b32 v{16+w}, v7 offset:{L_O+1024*w}")
    a(f"s_mul_i32 s72, s81, {PART_STRIDE}")
    a(f"s_add_u32 s72, s72, {WS_PART}")
    a("s_lshl_b32 s78, s91, 10")
    a("v_lshl_add_u32 v6, v6, 3, s78")
    a("s_lshl_b32 s78, s91, 4")
    a("v_mov_b32 v7, s78")
    a(f"v_mov_b32 v13, s{STAG}")
    a(f"v_mov_b32 v41, s{STAG}")
    a(f"v_mov_b32 v43, s{STAG}")
    a("s_waitcnt lgkmcnt(8)")
    a("v_max3_f32 v40, v24, v26, v28")
    a("v_max3_f32 v40, v40, v30, v32")
    a("v_max3_f32 v40, v40, v34, v36")
    a("v_max_f32 v40, v40, v38")
    for w in range(8):
        a(f"v_sub_f32 v{24+2*w}, v{24+2*w}, v40")
    for w in range(8):
        a(f"v_mul_f32 v{24+2*w}, s87, v{24+2*w}")
    for w in range(8):
        a(f"v_exp_f32 v{24+2*w}, v{24+2*w}")
    a("s_waitcnt lgkmcnt(0)")
    a("v_mul_f32 v12, v16, v24")
    a("v_mul_f32 v42, v25, v24")
    for w in range(1, 8):
        a(f"v_fmac_f32 v12, v{16+w}, v{24+2*w}")
        a(f"v_fmac_f32 v42, v{25+2*w}, v{24+2*w}")
    a(f"buffer_store_dwordx2 v[12:13], v6, s[{SWS}:{SWS+3}], s72 offen sc1")
    a("s_mov_b64 exec, 1")
    a(f"buffer_store_dwordx4 v[40:43], v7, s[{SWS}:{SWS+3}], s72 offen offset:2048 sc1")
    a("s_mov_b64 exec, -1")
    a("L_nopub:")
    stamp(7)
    a(f"s_cmp_lt_u32 s2, {NCOMB}")
    a("s_cbranch_scc0 L_notcomb")
    a("s_cmp_lt_u32 s3, 5")
    a("s_cbranch_scc0 L_gather")
    a(f"v_mul_u32_u24 v46, 9216, v{VG}")
    a("s_lshl_b32 s72, s3, 4")
    a(f"v_add_u32 v47, s72, v{VC}")
    a("v_min_u32 v47, 71, v47")
    a("v_lshl_add_u32 v46, v47, 4, v46")
    a(f"v_add_u32 v46, {L_BLK}, v46")
    TMP = 48
    for ks in range(4):
        for i in range(8):
            a(f"ds_read_b128 v[{TMP+4*i}:{TMP+4*i+3}], v46 offset:{1152*i}")
        if ks < 3:
            a("v_add_u32 v46, 36864, v46")
        a("s_waitcnt lgkmcnt(0)")
        for j in range(8):
            if ks >= 2:
                perm_tile(a, TMP, VV + 32 * (ks - 2) + 4 * j, j)
            else:
                perm_tile(a, TMP, 8, j)
                for x in range(4):
                    a(f"v_accvgpr_write_b32 a{32*ks+4*j+x}, v{8+x}")
    selmasks(VC, 8)
    a("s_lshl_b32 s72, s3, 7")
    a(f"v_lshl_add_u32 v46, v{VG}, 5, s72")
    a("v_mov_b32 v8, 576")
    a("v_cmp_lt_u32 s[10:11], v46, v8")
    a("v_lshlrev_b32 v46, 4, v46")
    a(f"v_lshl_add_u32 v46, v{VC}, 3, v46")
    a("s_mul_i32 s72, s2, 9216")
    a(f"s_add_u32 s72, s72, {WS_YP}")
    a("v_and_b32 v47, 1, v0")
    a("v_lshlrev_b32 v47, 8, v47")
    a(f"v_lshl_add_u32 v47, v{VG}, 4, v47")
    for r in range(4):
        a(f"v_mov_b32 v{25+2*r}, s{STAG}")
    a("s_branch L_barD")
    a("L_gather:")
    a("s_cmp_lt_u32 s3, 7")
    a("s_cbranch_scc0 L_finish")
    a("s_sub_u32 s73, s3, 5")
    a(f"s_mov_b32 s91, {SPIN_MAX}")
    a("s_cmp_lt_u32 s2, 32")
    a("s_cbranch_scc0 L_gather_h")
    a("s_lshr_b32 s76, s2, 1")
    a("s_and_b32 s77, s2, 1")
    a("s_lshl_b32 s78, s73, 4")
    a("s_add_u32 s78, s78, s76")
    a(f"s_mul_i32 s78, s78, {8*PART_STRIDE}")
    a(f"s_add_u32 s78, s78, {WS_PART}")
    a("s_lshl_b32 s79, s77, 10")
    a("v_lshl_add_u32 v7, v0, 4, s79")
    a("s_lshl_b32 s79, s77, 4")
    a("s_add_u32 s79, s79, 2048")
    a("v_mov_b32 v8, s79")
    OB, MB = 48, 84
    a("L_pollp:")
    a("s_mov_b32 s72, s78")
    for s in range(8):
        a(f"buffer_load_dwordx4 v[{OB+4*s}:{OB+3+4*s}], v7, s[{SWS}:{SWS+3}], s72 offen sc1")
        a(f"buffer_load_dwordx4 v[{MB+4*s}:{MB+3+4*s}], v8, s[{SWS}:{SWS+3}], s72 offen sc1")
        if s < 7:
            a(f"s_add_u32 s72, s72, {PART_STRIDE}")
    a("s_waitcnt vmcnt(0)")
    tagfold([OB + 4*s + k for s in range(8) for k in (1, 3)] + [MB + 4*s + k for s in range(8) for k in (1, 3)], 9, 10)
    poll_tail("L_pollp", "L_pollp_done", 91)
    stamp(8)
    a(f"v_max3_f32 v2, v{MB}, v{MB+4}, v{MB+8}")
    a(f"v_max3_f32 v2, v2, v{MB+12}, v{MB+16}")
    a(f"v_max3_f32 v2, v2, v{MB+20}, v{MB+24}")
    a(f"v_max_f32 v2, v2, v{MB+28}")
    for s in range(8):
        a(f"v_sub_f32 v{MB+4*s}, v{MB+4*s}, v2")
    for s in range(8):
        a(f"v_mul_f32 v{MB+4*s}, s87, v{MB+4*s}")
    for s in range(8):
        a(f"v_exp_f32 v{MB+4*s}, v{MB+4*s}")
    a("s_nop 0")
    a(f"v_mul_f32 v3, v{OB}, v{MB}")
    a(f"v_mul_f32 v4, v{OB+2}, v{MB}")
    a(f"v_mul_f32 v5, v{MB+2}, v{MB}")
    for s in range(1, 8):
        a(f"v_fmac_f32 v3, v{OB+4*s}, v{MB+4*s}")
        a(f"v_fmac_f32 v4, v{OB+4*s+2}, v{MB+4*s}")
        a(f"v_fmac_f32 v5, v{MB+4*s+2}, v{MB+4*s}")
    a("v_rcp_f32 v6, v5")
    a("s_nop 0")
    for r in (3, 4):
        a(f"v_mul_f32 v9, v{r}, v6")
        a(f"v_fma_f32 v{r}, -v9, v5, v{r}")
        a(f"v_fma_f32 v{r}, v{r}, v6, v9")
    a("v_cvt_pk_bf16_f32 v3, v3, v4")
    a("s_lshl_b32 s79, s73, 8")
    a("v_lshl_add_u32 v6, v0, 2, s79")
    a(f"ds_write_b32 v6, v3 offset:{L_Z}")
    a("s_branch L_zdone")
    a("L_gather_h:")
    a("s_sub_u32 s76, s2, 32")
    a("s_mul_i32 s76, s76, 12288")
    a("s_lshl_b32 s78, s73, 10")
    a("s_add_u32 s78, s78, s76")
    a(f"s_add_u32 s78, s78, {WS_GP}")
    a("s_add_u32 s79, s78, 4096")
    a("s_add_u32 s80, s78, 8192")
    GB = 48
    a("L_pollh:")
    for i in range(6):
        a(f"buffer_load_dwordx4 v[{GB+4*i}:{GB+4*i+3}], v{VOV}, s[{SWS}:{SWS+3}], s{78 + i//2} offen offset:{2048*(i%2)} sc1")
    a("s_waitcnt vmcnt(0)")
    tagfold([GB + 4*i + k for i in range(6) for k in (1, 3)], 9, 10)
    poll_tail("L_pollh", "L_pollh_done", 91)
    for m in range(2):
        for k in (0, 2):
            r = GB + 12 * m + k
            a(f"v_add_f32 v{r}, v{r}, v{r+4}")
            a(f"v_add_f32 v{r}, v{r}, v{r+8}")
            bf16r(a, r)
    k0 = math.sqrt(2.0 / math.pi)
    a(f"v_mov_b32 v11, {f32(0.044715)}")
    for g in (GB, GB + 2):
        a(f"v_mul_f32 v10, v{g}, v{g}")
        a(f"v_mul_f32 v10, v10, v{g}")
        a(f"v_fma_f32 v10, v10, v11, v{g}")
        a(f"v_mul_f32 v10, {f32(-2.0*k0*LOG2E)}, v10")
        a("v_exp_f32 v10, v10")
        a("s_nop 0")
        a("v_add_f32 v10, 1.0, v10")
        a("v_rcp_f32 v10, v10")
        a("s_nop 0")
        a(f"v_mul_f32 v{g}, v{g}, v10")
        bf16r(a, g)
        a(f"v_mul_f32 v{g}, v{g}, v{g+12}")
        a(f"v_cvt_pk_bf16_f32 v{g}, v{g}, v{g}")
    a("s_lshl_b32 s79, s73, 7")
    a("v_lshl_add_u32 v6, v0, 1, s79")
    a(f"ds_write_b16 v6, v{GB} offset:{L_Z}")
    a(f"ds_write_b16 v6, v{GB+2} offset:{L_Z+256}")
    a("L_zdone:")
    a("s_waitcnt lgkmcnt(0)")
    a("s_barrier")
    a("s_branch L_finish")
    a("L_barD:")
    a("s_barrier")
    stamp(9)
    for ks in range(4):
        a(f"ds_read_b128 v[{8+4*ks}:{11+4*ks}], v47 offset:{L_Z + 64*ks}")
    DA = 48
    for ks in range(4):
        a(f"s_waitcnt lgkmcnt({3-ks})")
        for j in range(8):
            A = f"a[{32*ks+4*j}:{32*ks+4*j+3}]" if ks < 2 else vr(VV + 32*(ks-2) + 4*j, 4)
            c = "0" if ks == 0 else vr(DA + 4*j, 4)
            a(f"v_mfma_f32_16x16x32_bf16 {vr(DA+4*j,4)}, {A}, v[{8+4*ks}:{11+4*ks}], {c}")
    a("s_nop 7")
    seltree(DA, 24, 2)
    a("s_mov_b64 exec, s[10:11]")
    for r in range(4):
        a(f"buffer_store_dwordx2 v[{24+2*r}:{25+2*r}], v46, s[{SWS}:{SWS+3}], s72 offen offset:{128*r} sc1")
    a("s_mov_b64 exec, -1")
    stamp(10)
    a("s_branch L_finish")
    a("L_notcomb:")
    a(f"s_sub_u32 s73, s2, {RED0}")
    a(f"s_cmp_lt_u32 s73, {NRED}")
    a("s_cbranch_scc0 L_finish")
    a("s_cmp_eq_u32 s3, 7")
    a("s_cbranch_scc0 L_finish")
    a("v_lshrrev_b32 v6, 3, v0")
    a("v_mul_u32_u24 v6, 9216, v6")
    a("v_and_b32 v7, 7, v0")
    a("s_lshl_b32 s72, s73, 3")
    a("v_add_u32 v7, s72, v7")
    a("v_lshl_add_u32 v6, v7, 4, v6")
    a("v_lshlrev_b32 v7, 1, v7")
    a(f"buffer_load_ushort v2, v7, s[{SX}:{SX+3}], 0 offen")
    a(f"buffer_load_ushort v3, v7, s[{SX}:{SX+3}], 0 offen offset:1152")
    a("v_cmp_gt_u32 vcc, 32, v0")
    a(f"v_mov_b32 v8, {OOB}")
    a("s_nop 0")
    a("v_cndmask_b32 v8, v8, v6, vcc")
    a(f"s_mov_b32 s91, {SPIN_MAX}")
    FB = 16
    a("L_pollf:")
    for i in range(5):
        a(f"s_mov_b32 s72, {WS_YP + 9216*(32+8*i)}")
        a(f"buffer_load_dwordx4 v[{FB+4*i}:{FB+4*i+3}], v{6 if i < 4 else 8}, s[{SWS}:{SWS+3}], s72 offen sc1")
    a("s_waitcnt vmcnt(0)")
    a(f"v_xor_b32 v9, s{STAG}, v{FB+17}")
    a(f"v_xor_b32 v10, s{STAG}, v{FB+19}")
    a("v_or_b32 v9, v9, v10")
    a("v_cndmask_b32 v9, 0, v9, vcc")
    tagfold([FB + 4*i + k for i in range(4) for k in (1, 3)], 9, 10, first=False)
    poll_tail("L_pollf", "L_pollf_done", 91)
    for i in range(1, 5):
        a(f"v_add_f32 v{FB}, v{FB}, v{FB+4*i}")
        a(f"v_add_f32 v{FB+2}, v{FB+2}, v{FB+4*i+2}")
    def red8(regs):
        a("s_nop 1")
        for r in regs:
            a(f"v_add_f32_dpp v{r}, v{r}, v{r} row_ror:8 row_mask:0xf bank_mask:0xf")
        for which in (16, 32):
            for k, r in enumerate(regs):
                a(f"v_mov_b32 v{10+k}, v{r}")
            a("s_nop 1")
            for k, r in enumerate(regs):
                a(f"v_permlane{which}_swap_b32 v{r}, v{10+k}")
            a("s_nop 1")
            for k, r in enumerate(regs):
                a(f"v_add_f32 v{r}, v{r}, v{10+k}")
    red8([FB, FB + 2])
    bf16r(a, FB); bf16r(a, FB + 2)
    a("v_lshlrev_b32 v2, 16, v2")
    a("v_lshlrev_b32 v3, 16, v3")
    YB = 40
    a(f"s_mov_b32 s91, {SPIN_MAX}")
    stamp(8)
    a("L_polly:")
    for i in range(4):
        a(f"s_mov_b32 s72, {WS_YP + 9216*(8*i)}")
        a(f"buffer_load_dwordx4 v[{YB+4*i}:{YB+4*i+3}], v6, s[{SWS}:{SWS+3}], s72 offen sc1")
    a("s_waitcnt vmcnt(0)")
    tagfold([YB + 4*i + k for i in range(4) for k in (1, 3)], 9, 10)
    poll_tail("L_polly", "L_polly_done", 91)
    stamp(9)
    for i in range(1, 4):
        a(f"v_add_f32 v{YB}, v{YB}, v{YB+4*i}")
        a(f"v_add_f32 v{YB+2}, v{YB+2}, v{YB+4*i+2}")
    red8([YB, YB + 2])
    bf16r(a, YB); bf16r(a, YB + 2)
    a(f"v_add_f32 v2, v2, v{YB}")
    a(f"v_add_f32 v3, v3, v{YB+2}")
    bf16r(a, 2); bf16r(a, 3)
    a(f"v_add_f32 v2, v2, v{FB}")
    a(f"v_add_f32 v3, v3, v{FB+2}")
    a("v_cvt_pk_bf16_f32 v2, v2, v2")
    a("v_cvt_pk_bf16_f32 v3, v3, v3")
    a("s_mov_b64 exec, 0xff")
    a(f"buffer_store_short v2, v7, s[{SOUT}:{SOUT+3}], 0 offen")
    a(f"buffer_store_short v3, v7, s[{SOUT}:{SOUT+3}], 0 offen offset:1152")
    a("s_cmp_eq_u32 s73, 0")
    a("s_cbranch_scc0 L_noepoch")
    a(f"s_sub_u32 s72, s{STAG}, {(TAGC - 1):#x}")
    a("v_mov_b32 v4, s72")
    a(f"v_mov_b32 v5, {WS_EPOCH}")
    a("s_mov_b64 exec, 1")
    a(f"buffer_store_dword v4, v5, s[{SWS}:{SWS+3}], 0 offen sc1")
    a("L_noepoch:")
    a("s_mov_b64 exec, -1")
    stamp(10)
    a("L_finish:")
    if ts:
        stamp(11)
        a("s_lshl_b32 s72, s2, 3")
        a("s_add_u32 s72, s72, s3")
        a("s_lshl_b32 s72, s72, 8")
        a(f"s_add_u32 s72, s72, {WS_TS}")
        a("v_lshlrev_b32 v2, 2, v0")
        a(f"buffer_store_dword v{VTS}, v2, s[{SWS}:{SWS+3}], s72 offen")
    a("L_end:")
    a("s_endpgm")
    out = HEADER
    out += f"; @launch grid=(256,1,1) block=(512,1,1) lds={LDS_SIZE}\n"
    out += '.amdgcn_target "amdgcn-amd-amdhsa--gfx950"\n.text\n'
    out += a.text()
    k = Asm()
    k('.section .rodata,"a"')
    k(".p2align 6")
    k.kd(NAME, NV + 64, NV)
    out += k.text()
    return out

if __name__ == "__main__":
    cfg = json.loads(sys.argv[2]) if len(sys.argv) > 2 else {}
    open(sys.argv[1], "w").write(gen(**cfg))
```

```python
import sys, math, json
from asmlib import *

HEADER = open("parallel_sum__gqa_block_cached__geglu_ffn__decode.s.ref").read().split("; Override launch")[0]
NAME = "parallel_sum__gqa_block_cached__geglu_ffn__decode_kernel"
SX, SK, SV, SWQ, SWO, SWG, SWU, SWD, SOUT, SWS = 28, 32, 36, 40, 44, 48, 52, 56, 60, 64
LOG2E = 1.4426950408889634
SCALE = 128 ** -0.5
WS_EPOCH = 0
WS_CNT  = 0x4000
WS_QP   = 0x10000
WS_GP   = 0x50000
WS_PART = 0xC0000
PART_STRIDE = 2176
WS_YP   = 0x150000
WS_TS   = 0x200000
WS_SIZE = 0x400000
TAGC = 0x9E3779B9
OOB = 0x40000000
L_RED2 = 0
L_QL  = 6144
L_CNT = 6656
L_Z   = 6720
L_RED = 7424
L_XNB = L_RED + 4096
L_O   = 7424
L_ML  = L_O + 8192
L_BLK = 16384
LDS_SIZE = L_BLK + 147456
assert L_ML + 128 <= L_BLK and L_XNB + 2304 <= L_BLK and LDS_SIZE <= 163840
STAG = 90
SPIN_MAX = 1 << 20
NCOMB = 68
RED0, NRED = 128, 72
GU0 = 40

def rowsum16(a, v, op="add"):
    for m in ("quad_perm:[1,0,3,2]", "quad_perm:[2,3,0,1]", "row_half_mirror", "row_mirror"):
        a("s_nop 1")
        a(f"v_{op}_f32_dpp v{v}, v{v}, v{v} {m} row_mask:0xf bank_mask:0xf")

def xchg(a, v, t, which, op="add"):
    a(f"v_mov_b32 v{t}, v{v}")
    a("s_nop 1")
    a(f"v_permlane{which}_swap_b32 v{v}, v{t}")
    a("s_nop 1")
    a(f"v_{op}_f32 v{v}, v{v}, v{t}")

def bf16r(a, v):
    a(f"v_cvt_pk_bf16_f32 v{v}, v{v}, v{v}")
    a(f"v_and_b32 v{v}, 0xffff0000, v{v}")

def perm_tile(a, vsrc, vdst, j):
    w = j >> 1
    sel = 83 if (j & 1) else 82
    for x in range(4):
        a(f"v_perm_b32 v{vdst+x}, v{vsrc+(2*x+1)*4+w}, v{vsrc+(2*x)*4+w}, s{sel}")

def ln_compute(a, vx, vf, vt):
    for i in range(9):
        a(f"v_lshlrev_b32 v{vf+2*i}, 16, v{vx+i}")
        a(f"v_and_b32 v{vf+2*i+1}, 0xffff0000, v{vx+i}")
    s, t, m, q, sd, rs = vt, vt + 1, vt + 2, vt + 3, vt + 4, vt + 5
    a(f"v_add_f32 v{s}, v{vf}, v{vf+1}")
    a(f"v_add_f32 v{t}, v{vf+2}, v{vf+3}")
    for i in range(4, 18, 2):
        a(f"v_add_f32 v{s}, v{s}, v{vf+i}")
        a(f"v_add_f32 v{t}, v{t}, v{vf+i+1}")
    a(f"v_add_f32 v{s}, v{s}, v{t}")
    rowsum16(a, s)
    xchg(a, s, t, 16)
    a(f"v_mul_f32 v{m}, {f32(1.0/576)}, v{s}")
    a(f"v_sub_f32 v{t}, v{vf}, v{m}")
    a(f"v_sub_f32 v{s}, v{vf+1}, v{m}")
    a(f"v_mul_f32 v{q}, v{t}, v{t}")
    a(f"v_mul_f32 v{sd}, v{s}, v{s}")
    for i in range(2, 18, 2):
        a(f"v_sub_f32 v{t}, v{vf+i}, v{m}")
        a(f"v_sub_f32 v{s}, v{vf+i+1}, v{m}")
        a(f"v_fmac_f32 v{q}, v{t}, v{t}")
        a(f"v_fmac_f32 v{sd}, v{s}, v{s}")
    a(f"v_add_f32 v{q}, v{q}, v{sd}")
    rowsum16(a, q)
    xchg(a, q, t, 16)
    a(f"v_mul_f32 v{q}, {f32(1.0/576)}, v{q}")
    bf16r(a, m)
    bf16r(a, q)
    a(f"v_add_f32 v{q}, {f32(1e-5)}, v{q}")
    bf16r(a, q)
    a(f"v_sqrt_f32 v{sd}, v{q}")
    a("s_nop 0")
    bf16r(a, sd)
    a(f"v_rcp_f32 v{rs}, v{sd}")
    a(f"v_and_b32 v{s}, 31, v0")
    a(f"v_lshlrev_b32 v{s}, 2, v{s}")
    a(f"v_lshrrev_b32 v{t}, 5, v0")
    a(f"v_mul_u32_u24 v{t}, 1152, v{t}")
    a(f"v_add_u32 v{s}, v{s}, v{t}")
    for i in range(18):
        a(f"v_sub_f32 v{vf+i}, v{vf+i}, v{m}")
    for i in range(9):
        a(f"v_cvt_pk_bf16_f32 v{vx+i}, v{vf+2*i}, v{vf+2*i+1}")
    for i in range(9):
        lo, hi = vf + 2 * i, vf + 2 * i + 1
        a(f"v_lshlrev_b32 v{lo}, 16, v{vx+i}")
        a(f"v_and_b32 v{hi}, 0xffff0000, v{vx+i}")
        a(f"v_mul_f32 v{t}, v{lo}, v{rs}")
        a(f"v_mul_f32 v{q}, v{hi}, v{rs}")
        a(f"v_fma_f32 v{lo}, -v{t}, v{sd}, v{lo}")
        a(f"v_fma_f32 v{hi}, -v{q}, v{sd}, v{hi}")
        a(f"v_fma_f32 v{lo}, v{lo}, v{rs}, v{t}")
        a(f"v_fma_f32 v{hi}, v{hi}, v{rs}, v{q}")
        a(f"v_cvt_pk_bf16_f32 v{vx+i}, v{lo}, v{hi}")
        a(f"ds_write_b32 v{s}, v{vx+i} offset:{L_XNB + 128*i}")

def gen(rot=1, ts=False, sleep=1, th=4, sched="glob", xmap=0, pool=0, ec=9, eg=3, late=0, rott=0, par=0):
    a = Asm()
    a.kernel_begin(NAME)
    VTS = 159
    def stamp(i):
        if not ts: return
        a("s_memrealtime s[100:101]")
        a("s_waitcnt lgkmcnt(0)")
        a(f"v_writelane_b32 v{VTS}, s100, {i}")
    def poll_tail(lab_loop, lab_done, cnt):
        a("s_nop 3")
        a("s_cmp_eq_u64 s[92:93], 0")
        a(f"s_cbranch_scc1 {lab_done}")
        a(f"s_sub_u32 s{cnt}, s{cnt}, 1")
        a(f"s_cbranch_scc1 {lab_done}")
        if sleep: a(f"s_sleep {sleep}")
        a(f"s_branch {lab_loop}")
        a(f"{lab_done}:")
    def tagfold(regs, acc, tmp, first=True):
        for i, r in enumerate(regs):
            if i == 0 and first:
                a(f"v_xor_b32 v{acc}, s{STAG}, v{r}")
            else:
                a(f"v_xor_b32 v{tmp}, s{STAG}, v{r}")
                a(f"v_or_b32 v{acc}, v{acc}, v{tmp}")
        a(f"v_cmp_ne_u32 s[92:93], 0, v{acc}")
    def selmasks(vc, vt):
        for k, sp in ((2, 4), (4, 6), (8, 8)):
            a(f"v_and_b32 v{vt}, {k}, v{vc}")
            a(f"v_cmp_ne_u32 s[{sp}:{sp+1}], 0, v{vt}")
    def seltree(DA, dst, dstep):
        for k in range(4):
            for r in range(4):
                a(f"v_cndmask_b32 v{DA+8*k+r}, v{DA+8*k+r}, v{DA+8*k+4+r}, s[4:5]")
        for k in range(2):
            for r in range(4):
                a(f"v_cndmask_b32 v{DA+16*k+r}, v{DA+16*k+r}, v{DA+16*k+8+r}, s[6:7]")
        for r in range(4):
            a(f"v_cndmask_b32 v{dst+dstep*r}, v{DA+r}, v{DA+16+r}, s[8:9]")
    VOK, VOV = 1, 2
    VM, VL, VAL, VT0 = 3, 4, 5, 6
    VS, VP, VPT, VQ, VACC, VV = 16, 24, 28, 36, 52, 84
    VCA, VONE, VG, VC = 148, 149, 150, 151
    NV = 160
    AK = 0
    a("s_cmp_ge_u32 s2, 256")
    a("s_cbranch_scc1 L_end")
    a("s_load_dwordx16 s[4:19], s[0:1], 0")
    a("s_load_dwordx8 s[20:27], s[0:1], 64")
    a("v_lshrrev_b32 v1, 6, v0")
    a("v_and_b32 v0, 63, v0")
    a("v_readfirstlane_b32 s3, v1")
    if ts: a(f"v_mov_b32 v{VTS}, 0")
    stamp(0)
    a("s_lshr_b32 s73, s2, 2")
    a("s_and_b32 s74, s2, 3")
    a("s_mul_i32 s75, s74, 144")
    a("s_mul_i32 s72, s3, 18")
    a("s_add_u32 s75, s75, s72")
    a("v_lshrrev_b32 v152, 3, v0")
    a("v_add_u32 v153, s75, v152")
    a("v_and_b32 v6, 7, v0")
    a("v_lshlrev_b32 v6, 4, v6")
    a("v_lshl_add_u32 v154, v153, 13, v6")
    a("v_cmp_gt_u32 vcc, 2, v152")
    a(f"v_mov_b32 v155, {OOB}")
    a("s_lshl_b32 s76, s73, 7")
    a("v_cndmask_b32 v155, v155, v154, vcc")
    a("s_add_u32 s77, s76, 65536")
    a("s_add_u32 s78, s76, 131072")
    a("v_lshrrev_b32 v6, 5, v0")
    a("v_mul_u32_u24 v6, 1152, v6")
    a("v_and_b32 v7, 31, v0")
    a("v_lshl_add_u32 v6, v7, 2, v6")
    a("s_waitcnt lgkmcnt(0)")
    a(f"s_load_dword s{STAG}, s[26:27], {WS_EPOCH}")
    a.srd(SX, 4, 2304)
    a.srd(SWQ, 10, 576 * 4096 * 2)
    VX, VF, VLT = 116, 126, 8
    VW = 36
    a("s_cmp_eq_u32 s3, 0")
    a("s_cbranch_scc0 L_nox")
    for i in range(9):
        a(f"buffer_load_dword v{VX+i}, v6, s[{SX}:{SX+3}], 0 offen offset:{128*i}")
    a("L_nox:")
    a(f"buffer_load_dwordx4 v[{VW}:{VW+3}], v154, s[{SWQ}:{SWQ+3}], s76 offen nt")
    a(f"buffer_load_dwordx4 v[{VW+4}:{VW+7}], v154, s[{SWQ}:{SWQ+3}], s77 offen nt")
    a(f"buffer_load_dwordx4 v[{VW+8}:{VW+11}], v155, s[{SWQ}:{SWQ+3}], s78 offen nt")
    a.srd(SK, 6, 1 << 28)
    a.srd(SV, 8, 1 << 28)
    a.srd(SWG, 16, 576 * 4608 * 2)
    a.srd(SWU, 18, 576 * 4608 * 2)
    a.srd(SWO, 12, 4096 * 576 * 2)
    a.srd(SWD, 20, 4608 * 576 * 2)
    a.srd(SOUT, 22, 2304)
    a.srd(SWS, 26, WS_SIZE)
    if xmap == 0:
        a("s_lshr_b32 s84, s2, 3")
        a("s_and_b32 s85, s2, 7")
    else:
        a("s_and_b32 s84, s2, 7")
        a("s_lshl_b32 s84, s84, 2")
        a("s_lshr_b32 s72, s2, 6")
        a("s_add_u32 s84, s84, s72")
        a("s_lshr_b32 s85, s2, 3")
        a("s_and_b32 s85, s85, 7")
    a("s_lshl_b32 s81, s84, 3")
    a("s_add_u32 s81, s81, s85")
    a("s_lshl_b32 s88, s84, 23")
    a("s_lshl_b32 s72, s84, 8")
    a(f"s_add_u32 s72, s72, {WS_CNT}")
    a("s_add_u32 s70, s26, s72")
    a("s_addc_u32 s71, s27, 0")
    a("s_add_u32 s72, s85, s84")
    a("s_and_b32 s72, s72, 7")
    a("s_mov_b32 s12, s72")
    a("s_lshl_b32 s68, s72, 5")
    a("s_add_u32 s68, s68, s84")
    a(f"s_cmp_lt_u32 s68, {NCOMB}")
    a("s_cselect_b32 s68, s68, 255")
    a("s_mul_i32 s69, s84, 5")
    a("s_add_u32 s69, s69, s72")
    a("s_sub_u32 s69, s69, 3")
    a("s_cmp_ge_u32 s72, 3")
    a("s_cselect_b32 s69, s69, 255")
    a("s_mul_i32 s91, s84, 7")
    a("s_add_u32 s91, s91, s72")
    a("s_sub_u32 s91, s91, 9")
    a("s_cmp_ge_u32 s72, 1")
    a("s_cselect_b32 s91, s91, 255")
    a("s_cmp_lt_u32 s84, 4")
    a("s_cselect_b32 s69, s69, s91")
    def counts(extras):
        tot = 1024 - pool + sum(extras)
        c = [tot // 8 - e for e in extras]
        i = 7
        while sum(c) < 1024 - pool:
            c[i] += 1; i -= 1
        b = [sum(c[:k]) for k in range(8)]
        return b, c
    def biased(ex, slabpar):
        return [e + (par if ((p ^ slabpar) & 1) == 0 else -par) for p, e in enumerate(ex)]
    exs = [[ec, ec, ec] + [eg] * 5, [ec, ec + eg] + [eg] * 6]
    tabs = [counts(biased(exs[k >> 1], k & 1)) for k in range(4)]
    for p in range(8):
        a(f"s_cmp_eq_u32 s12, {p}")
        for ti, (b, c) in enumerate(tabs):
            a(f"s_cselect_b32 s{14+ti}, {b[p] | (c[p] << 16)}, s{14+ti}")
    a("s_bitcmp1_b32 s84, 0")
    a("s_cselect_b32 s14, s15, s14")
    a("s_cselect_b32 s15, s17, s16")
    a("s_cmp_lt_u32 s84, 4")
    a("s_cselect_b32 s14, s14, s15")
    a("s_and_b32 s89, s14, 0xffff")
    a("s_lshr_b32 s80, s14, 16")
    a(f"s_mul_i32 s19, s84, {rott}")
    a("s_mov_b32 s82, 0x05040100")
    a("s_mov_b32 s83, 0x07060302")
    a(f"s_mov_b32 s86, {f32(SCALE)}")
    a(f"s_mov_b32 s87, {f32(LOG2E)}")
    a(f"v_lshrrev_b32 v{VG}, 4, v0")
    a(f"v_and_b32 v{VC}, 15, v0")
    a("v_and_b32 v6, 3, v0")
    a("v_lshlrev_b32 v6, 2, v6")
    a("v_bfe_u32 v7, v0, 2, 2")
    a("v_add_u32 v6, v6, v7")
    a("v_lshlrev_b32 v6, 8, v6")
    a(f"v_lshl_add_u32 v{VOK}, v{VG}, 4, v6")
    a(f"v_lshlrev_b32 v{VOV}, 4, v0")
    a(f"v_mov_b32 v{VCA}, {L_CNT}")
    a(f"v_mov_b32 v{VONE}, 1")
    def tile_off(buf):
        su, so = 98 + buf, 94 + 2 * buf
        a(f"s_add_u32 s72, s{su}, s19")
        a("s_and_b32 s72, s72, 1023")
        a("s_lshl_b32 s72, s72, 13")
        a("s_add_u32 s72, s72, s88")
        a(f"s_cmp_lt_u32 s{su}, 1024")
        a(f"s_cselect_b32 s{so}, s72, {OOB}")
        a(f"s_add_u32 s{so+1}, s{so}, 4096")
    def kloads(buf):
        for t in range(2):
            for s in range(4):
                r = AK + 32 * buf + 16 * t + 4 * s
                a(f"buffer_load_dwordx4 a[{r}:{r+3}], v{VOK}, s[{SK}:{SK+3}], s{94+2*buf+t} offen offset:{64*s} nt")
    def vloads(buf):
        for i in range(8):
            r = VV + 32 * buf + 4 * i
            a(f"buffer_load_dwordx4 v[{r}:{r+3}], v{VOV}, s[{SV}:{SV+3}], s{94+2*buf+i//4} offen offset:{1024*(i%4)} nt")
    def dma_block(throttle):
        l1, l2 = a.label("L_dma_wd"), a.label("L_nodma")
        a(f"s_cmp_lt_u32 s68, {NCOMB}")
        a(f"s_cbranch_scc0 {l2}")
        a("s_mul_i32 s72, s3, 18432")
        a("s_cmp_lt_u32 s68, 32")
        a(f"s_cbranch_scc0 {l1}")
        for which in (0, 1):
            srd = SWO if which == 0 else SWD
            if which == 1:
                a(f"{l1}:")
                a("s_sub_u32 s91, s68, 32")
                a("s_mul_i32 s91, s91, 147456")
            else:
                a("s_mul_i32 s91, s68, 147456")
            a("s_add_u32 s91, s91, s72")
            for i in range(18):
                if i % 4 == 0:
                    if throttle is not None and i % 8 == 0: a(f"s_waitcnt vmcnt({throttle})")
                    a(f"s_add_u32 m0, s72, {L_BLK + 1024*i}")
                    a(f"s_add_u32 s78, s91, {1024*i}")
                a(f"buffer_load_dwordx4 v{VOV}, s[{srd}:{srd+3}], s78 offen offset:{1024*(i%4)} nt lds")
            if which == 0:
                a(f"s_branch {l2}")
        a(f"{l2}:")
    a("s_add_u32 s98, s89, s3")
    a("s_sub_u32 s98, s98, 1")
    a("s_add_u32 s99, s98, 7")
    a("s_cmp_eq_u32 s3, 0")
    a("s_cbranch_scc1 L_w0_ln")
    tile_off(0)
    kloads(0)
    a("s_branch L_A0")
    a("L_w0_ln:")
    a("s_and_b32 s72, s2, 15")
    a("s_cmp_lt_u32 s72, 2")
    a("s_cbranch_scc0 L_noinit")
    a("s_lshl_b32 s72, s72, 4")
    a("s_lshr_b32 s91, s2, 4")
    a("s_add_u32 s72, s72, s91")
    a("s_lshl_b32 s72, s72, 8")
    a(f"s_add_u32 s72, s72, {WS_CNT}")
    a(f"v_mov_b32 v6, {1024-pool}")
    a("v_mov_b32 v7, 0")
    a("s_mov_b64 exec, 1")
    a(f"buffer_store_dword v6, v7, s[{SWS}:{SWS+3}], s72 offen sc1")
    a("s_mov_b64 exec, -1")
    a("L_noinit:")
    a("s_waitcnt vmcnt(3)")
    stamp(1)
    ln_compute(a, VX, VF, VLT)
    a("v_mov_b32 v6, 16")
    a(f"ds_write_b32 v{VCA}, v6")
    a("s_waitcnt vmcnt(0) lgkmcnt(0)")
    a("L_A0:")
    a("v_add_u32 v6, 8, v153")
    a("v_add_u32 v7, 16, v153")
    a("v_min_u32 v7, 575, v7")
    a("v_lshlrev_b32 v153, 1, v153")
    a("v_lshlrev_b32 v6, 1, v6")
    a("v_lshlrev_b32 v7, 1, v7")
    a("s_barrier")
    XR = 8
    for i, r in enumerate((153, 6, 7)):
        a(f"ds_read_u16 v{XR+2*i}, v{r} offset:{L_XNB}")
        a(f"ds_read_u16 v{XR+2*i+1}, v{r} offset:{L_XNB+1152}")
    a("s_waitcnt lgkmcnt(0)")
    a(f"s_add_u32 s{STAG}, s{STAG}, {TAGC:#x}")
    for i in range(6):
        a(f"v_lshlrev_b32 v{XR+i}, 16, v{XR+i}")
    a("s_waitcnt vmcnt(8)")
    QA = 16
    for i in range(3):
        for w in range(4):
            a(f"v_lshlrev_b32 v14, 16, v{VW+4*i+w}")
            a(f"v_and_b32 v15, 0xffff0000, v{VW+4*i+w}")
            op = "v_mul_f32" if i == 0 else "v_fmac_f32"
            a(f"{op} v{QA+2*w}, v14, v{XR+2*i}")
            a(f"{op} v{QA+2*w+1}, v15, v{XR+2*i}")
            a(f"{op} v{QA+8+2*w}, v14, v{XR+2*i+1}")
            a(f"{op} v{QA+8+2*w+1}, v15, v{XR+2*i+1}")
    a("s_nop 1")
    for k in range(8):
        a(f"v_permlane32_swap_b32 v{QA+k}, v{QA+8+k}")
    a("s_nop 1")
    for k in range(8):
        a(f"v_add_f32 v{QA+k}, v{QA+k}, v{QA+8+k}")
    a("s_nop 1")
    for k in range(4):
        a(f"v_permlane16_swap_b32 v{QA+k}, v{QA+4+k}")
    a("s_nop 1")
    for k in range(4):
        a(f"v_add_f32 v{QA+k}, v{QA+k}, v{QA+4+k}")
    a("s_nop 1")
    for k in range(4):
        a(f"v_add_f32_dpp v{QA+k}, v{QA+k}, v{QA+k} row_ror:8 row_mask:0xf bank_mask:0xf")
    a("v_lshrrev_b32 v6, 5, v0")
    a("v_lshlrev_b32 v6, 8, v6")
    a("v_and_b32 v7, 7, v0")
    a("v_lshl_add_u32 v6, v7, 5, v6")
    a("v_bfe_u32 v7, v0, 4, 1")
    a("v_lshl_add_u32 v6, v7, 4, v6")
    a("s_lshl_b32 s72, s3, 9")
    a("v_add_u32 v6, s72, v6")
    a(f"ds_write_b128 v6, v[{QA}:{QA+3}] offset:{L_RED}")
    a("s_waitcnt lgkmcnt(0)")
    a("s_barrier")
    stamp(2)
    a("s_cmp_eq_u32 s3, 0")
    a("s_cbranch_scc0 L_prefetch")
    a("v_lshlrev_b32 v6, 3, v0")
    for w in range(8):
        a(f"ds_read_b64 v[{16+2*w}:{17+2*w}], v6 offset:{L_RED + 512*w}")
    a("v_lshrrev_b32 v6, 5, v0")
    a("v_lshlrev_b32 v6, 15, v6")
    a("v_and_b32 v7, 31, v0")
    a("v_lshl_add_u32 v6, v7, 4, v6")
    a("s_lshl_b32 s72, s74, 16")
    a("s_lshl_b32 s91, s73, 9")
    a("s_add_u32 s72, s72, s91")
    a(f"s_add_u32 s72, s72, {WS_QP}")
    a(f"v_mov_b32 v9, s{STAG}")
    a(f"v_mov_b32 v11, s{STAG}")
    a("s_waitcnt lgkmcnt(0)")
    a("v_add_f32 v8, v16, v18")
    a("v_add_f32 v10, v17, v19")
    for w in range(2, 8):
        a(f"v_add_f32 v8, v8, v{16+2*w}")
        a(f"v_add_f32 v10, v10, v{17+2*w}")
    a(f"buffer_store_dwordx4 v[8:11], v6, s[{SWS}:{SWS+3}], s72 offen sc1")
    stamp(3)
    a("s_lshr_b32 s72, s84, 4")
    a("s_lshl_b32 s72, s72, 15")
    a("s_and_b32 s91, s84, 15")
    a("s_lshl_b32 s91, s91, 11")
    a("s_add_u32 s72, s72, s91")
    a(f"s_add_u32 s76, s72, {WS_QP}")
    for rb in range(1, 4):
        a(f"s_add_u32 s{76+rb}, s76, {65536*rb}")
    a(f"s_mov_b32 s91, {SPIN_MAX}")
    PB = 16
    a("L_pollq:")
    for rb in range(4):
        for h in range(2):
            r = PB + 8 * rb + 4 * h
            a(f"buffer_load_dwordx4 v[{r}:{r+3}], v{VOV}, s[{SWS}:{SWS+3}], s{76+rb} offen offset:{1024*h} sc1")
    a("s_waitcnt vmcnt(0)")
    tagfold([PB + 4*i + k for i in range(8) for k in (1, 3)], 9, 10)
    poll_tail("L_pollq", "L_pollq_done", 91)
    for h in range(2):
        for k in (0, 2):
            r = PB + 4 * h + k
            a(f"v_add_f32 v{r}, v{r}, v{r+8}")
            a(f"v_add_f32 v{r+16}, v{r+16}, v{r+24}")
            a(f"v_add_f32 v{r}, v{r}, v{r+16}")
        a(f"v_cvt_pk_bf16_f32 v{8+h}, v{PB+4*h}, v{PB+4*h+2}")
    a("v_lshlrev_b32 v6, 2, v0")
    a(f"ds_write_b32 v6, v8 offset:{L_QL}")
    a(f"ds_write_b32 v6, v9 offset:{L_QL+256}")
    a("s_waitcnt lgkmcnt(0)")
    a("s_branch L_B")
    a("L_prefetch:")
    a("s_mov_b32 s73, s69")
    a("s_mul_i32 s74, s73, 171")
    a("s_lshr_b32 s74, s74, 9")
    a("s_mul_i32 s72, s74, 3")
    a("s_sub_u32 s75, s73, s72")
    a("s_cmp_lt_u32 s69, 216")
    a("s_cselect_b32 s79, 1, 0")
    a("s_cmp_lt_u32 s3, 7")
    a("s_cselect_b32 s79, s79, 0")
    a("s_cmp_eq_u32 s79, 0")
    a("s_cbranch_scc1 L_nogu1")
    a("s_mul_i32 s76, s75, 192")
    a("s_lshl_b32 s72, s3, 5")
    a("s_add_u32 s76, s76, s72")
    a("s_sub_u32 s76, s76, 32")
    a(f"v_lshl_add_u32 v6, v{VG}, 3, s76")
    a("v_mul_u32_u24 v7, 9216, v6")
    a(f"v_lshl_add_u32 v7, v{VC}, 4, v7")
    a("s_lshr_b32 s77, s74, 1")
    a("s_lshl_b32 s77, s77, 8")
    a("v_and_b32 v8, 1, v0")
    a("v_mul_u32_u24 v8, 1152, v8")
    a("v_lshl_add_u32 v8, v6, 1, v8")
    a(f"ds_read_b128 v[12:15], v8 offset:{L_XNB}")
    a(f"s_waitcnt vmcnt({th})")
    a("s_bitcmp1_b32 s74, 0")
    a("s_cbranch_scc1 L_gu_up")
    for which, srd in ((0, SWG), (1, SWU)):
        if which: a("L_gu_up:")
        for i in range(8):
            a(f"buffer_load_dwordx4 v[{VACC+4*i}:{VACC+4*i+3}], v7, s[{srd}:{srd+3}], s77 offen nt")
            if i < 7: a("s_add_u32 s77, s77, 9216")
        if not which: a("s_branch L_nogu1")
    a("L_nogu1:")
    a(f"s_waitcnt vmcnt({th})")
    vloads(0)
    a("s_cmp_eq_u32 s79, 0")
    a("s_cbranch_scc1 L_nogu2")
    selmasks(VC, 6)
    a("s_waitcnt vmcnt(8) lgkmcnt(0)")
    DA = 16
    for j in range(8):
        tb = 8 if (j & 1) else 48
        perm_tile(a, VACC, tb, j)
        a("s_nop 1")
        a(f"v_mfma_f32_16x16x32_bf16 {vr(DA+4*j,4)}, {vr(tb,4)}, v[12:15], 0")
    a("s_lshl_b32 s72, s3, 10")
    a(f"v_add_u32 v6, s72, v{VOV}")
    a("s_nop 7")
    seltree(DA, 8, 1)
    a(f"ds_write_b128 v6, v[8:11] offset:{L_RED2 - 1024}") if L_RED2 >= 1024 else None
    if L_RED2 < 1024:
        a("v_subrev_u32 v6, 1024, v6")
        a(f"ds_write_b128 v6, v[8:11] offset:{L_RED2}")
    a("L_nogu2:")
    a(f"s_waitcnt vmcnt({th})")
    tile_off(1)
    kloads(1)
    a(f"s_waitcnt vmcnt({th})")
    vloads(1)
    dma_block(th)
    a("s_waitcnt lgkmcnt(0)")
    stamp(3)
    a("L_B:")
    a("s_barrier")
    stamp(4)
    a("v_and_b32 v6, 1, v0")
    a("v_lshlrev_b32 v6, 8, v6")
    a(f"v_lshl_add_u32 v6, v{VG}, 4, v6")
    for s in range(4):
        a(f"ds_read_b128 v[{VQ+4*s}:{VQ+4*s+3}], v6 offset:{L_QL + 64*s}")
    a("s_cmp_eq_u32 s3, 0")
    a("s_cbranch_scc0 L_w0_done")
    a("s_add_u32 s98, s89, 14")
    a("s_add_u32 s99, s89, 15")
    tile_off(0)
    kloads(0)
    vloads(0)
    tile_off(1)
    kloads(1)
    vloads(1)
    dma_block(None)
    a("L_w0_done:")
    a("s_cmp_eq_u32 s3, 7")
    a("s_cbranch_scc0 L_nogu3")
    a("s_cmp_lt_u32 s69, 216")
    a("s_cbranch_scc0 L_nogu3")
    for w in range(6):
        a(f"ds_read_b128 v[{VACC+4*w}:{VACC+4*w+3}], v{VOV} offset:{L_RED2 + 1024*w}")
    a(f"v_lshlrev_b32 v6, 9, v{VG}")
    a(f"v_lshl_add_u32 v6, v{VC}, 3, v6")
    a("s_lshl_b32 s72, s73, 11")
    a(f"s_add_u32 s72, s72, {WS_GP}")
    a("s_waitcnt lgkmcnt(0)")
    for w in range(1, 6):
        for r in range(4):
            a(f"v_add_f32 v{VACC+r}, v{VACC+r}, v{VACC+4*w+r}")
    for r in range(4):
        a(f"v_mov_b32 v{8+2*r}, v{VACC+r}")
        a(f"v_mov_b32 v{9+2*r}, s{STAG}")
    for r in range(4):
        a(f"buffer_store_dwordx2 v[{8+2*r}:{9+2*r}], v6, s[{SWS}:{SWS+3}], s72 offen offset:{128*r} sc1")
    a("L_nogu3:")
    for i in range(32):
        a(f"v_mov_b32 v{VACC+i}, 0")
    a(f"v_mov_b32 v{VM}, 0xf149f2ca")
    a(f"v_mov_b32 v{VL}, 0")
    a("s_waitcnt lgkmcnt(0)")
    a("L_loop:")
    for buf in range(2):
        a(f"s_cmp_ge_u32 s{98+buf}, 1024")
        a("s_cbranch_scc1 L_loop_done")
        lt = a.label("L_have")
        a("s_mov_b64 exec, 1")
        a(f"ds_add_rtn_u32 v15, v{VCA}, v{VONE}")
        a("s_mov_b64 exec, -1")
        a("s_waitcnt vmcnt(24)")
        for s in range(4):
            for t in range(2):
                r = AK + 32 * buf + 16 * t + 4 * s
                c = "0" if s == 0 else vr(VS + 4 * t, 4)
                a(f"v_mfma_f32_16x16x32_bf16 {vr(VS+4*t,4)}, a[{r}:{r+3}], {vr(VQ+4*s,4)}, {c}")
        a("s_waitcnt lgkmcnt(0)")
        a("v_readfirstlane_b32 s72, v15")
        a("s_nop 3")
        a(f"s_add_u32 s{98+buf}, s72, s89")
        a("s_cmp_lt_u32 s72, s80")
        a(f"s_cbranch_scc1 {lt}")
        a(f"s_mov_b32 s{98+buf}, 1024")
        if pool and not late:
            a("s_cmp_ge_u32 s72, 0x10000")
            a(f"s_cbranch_scc1 {lt}")
            a(f"s_mov_b32 s{98+buf}, 1")
            a(f"s_atomic_add s{98+buf}, s[70:71], 0 glc")
            a("s_waitcnt lgkmcnt(0)")
            a(f"s_cmp_lt_u32 s{98+buf}, 1024")
            a(f"s_cbranch_scc1 {lt}")
            a("v_mov_b32 v15, 0x10000")
            a("s_mov_b64 exec, 1")
            a(f"ds_add_u32 v{VCA}, v15")
            a("s_mov_b64 exec, -1")
        a(f"{lt}:")
        tile_off(buf)
        kloads(buf)
        T = VT0
        for x in range(4):
            a(f"v_cvt_pk_bf16_f32 v{T+x}, v{VS+2*x}, v{VS+2*x+1}")
        for x in range(4):
            a(f"v_lshlrev_b32 v{VS+2*x}, 16, v{T+x}")
            a(f"v_and_b32 v{VS+2*x+1}, 0xffff0000, v{T+x}")
        for x in range(8):
            a(f"v_mul_f32 v{VS+x}, s86, v{VS+x}")
        for x in range(4):
            a(f"v_cvt_pk_bf16_f32 v{T+x}, v{VS+2*x}, v{VS+2*x+1}")
        for x in range(4):
            a(f"v_lshlrev_b32 v{VS+2*x}, 16, v{T+x}")
            a(f"v_and_b32 v{VS+2*x+1}, 0xffff0000, v{T+x}")
        a(f"v_max3_f32 v{T}, v{VS}, v{VS+1}, v{VS+2}")
        a(f"v_max3_f32 v{T+1}, v{VS+3}, v{VS+4}, v{VS+5}")
        a(f"v_max3_f32 v{T}, v{T}, v{VS+6}, v{VS+7}")
        a(f"v_max3_f32 v{T}, v{T}, v{T+1}, v{VM}")
        xchg(a, T, T + 1, 16, "max")
        xchg(a, T, T + 1, 32, "max")
        a(f"v_sub_f32 v{VAL}, v{VM}, v{T}")
        a(f"v_mul_f32 v{VAL}, s87, v{VAL}")
        a(f"v_exp_f32 v{VAL}, v{VAL}")
        a(f"v_mov_b32 v{VM}, v{T}")
        a(f"v_mul_f32 v{T+1}, s87, v{T}")
        for x in range(8):
            a(f"v_fma_f32 v{VS+x}, v{VS+x}, s87, -v{T+1}")
        for x in range(8):
            a(f"v_exp_f32 v{VS+x}, v{VS+x}")
        a(f"v_cmp_neq_f32 vcc, 1.0, v{VAL}")
        a(f"v_mul_f32 v{VL}, v{VL}, v{VAL}")
        for x in range(4):
            a(f"v_cvt_pk_bf16_f32 v{VP+x}, v{VS+2*x}, v{VS+2*x+1}")
        a(f"v_add_f32 v{T}, v{VS}, v{VS+1}")
        a(f"v_add_f32 v{T+1}, v{VS+2}, v{VS+3}")
        a(f"v_add_f32 v{T+2}, v{VS+4}, v{VS+5}")
        a(f"v_add_f32 v{T+3}, v{VS+6}, v{VS+7}")
        a(f"v_add_f32 v{T}, v{T}, v{T+1}")
        a(f"v_add_f32 v{T+2}, v{T+2}, v{T+3}")
        a(f"v_add_f32 v{T}, v{T}, v{T+2}")
        a(f"v_add_f32 v{VL}, v{VL}, v{T}")
        lab = a.label("L_noscale")
        a(f"s_cbranch_vccz {lab}")
        for i in range(32):
            a(f"v_mul_f32 v{VACC+i}, v{VACC+i}, v{VAL}")
        a(f"{lab}:")
        a("s_waitcnt vmcnt(24)")
        for j in range(8):
            tb = VPT + 4 * (j & 1)
            perm_tile(a, VV + 32 * buf, tb, j)
            a("s_nop 1")
            a(f"v_mfma_f32_16x16x32_bf16 {vr(VACC+4*j,4)}, {vr(tb,4)}, {vr(VP,4)}, {vr(VACC+4*j,4)}")
        vloads(buf)
    a("s_branch L_loop")
    a("L_loop_done:")
    if pool and late:
        a(f"ds_read_b32 v15, v{VCA}")
        a("s_waitcnt lgkmcnt(0)")
        a("v_readfirstlane_b32 s72, v15")
        a("s_nop 3")
        a("s_cmp_ge_u32 s72, 0x10000")
        a("s_cbranch_scc1 L_all_done")
        a("s_mov_b32 s98, 1")
        a("s_atomic_add s98, s[70:71], 0 glc")
        a("s_waitcnt lgkmcnt(0)")
        a("s_cmp_lt_u32 s98, 1024")
        a("s_cbranch_scc0 L_pool_empty")
        a("s_mov_b32 s99, 1024")
        tile_off(0)
        kloads(0)
        vloads(0)
        tile_off(1)
        kloads(1)
        vloads(1)
        a("s_branch L_loop")
        a("L_pool_empty:")
        a("v_mov_b32 v15, 0x10000")
        a("s_mov_b64 exec, 1")
        a(f"ds_add_u32 v{VCA}, v15")
        a("s_mov_b64 exec, -1")
        a("L_all_done:")
    stamp(5)
    xchg(a, VL, VT0, 16)
    xchg(a, VL, VT0, 32)
    a(f"v_lshl_add_u32 v8, v{VC}, 2, v{VG}")
    a("v_lshlrev_b32 v8, 7, v8")
    a("s_lshl_b32 s72, s3, 10")
    a("v_add_u32 v8, s72, v8")
    a("s_lshl_b32 s72, s3, 4")
    a(f"v_lshl_add_u32 v9, v{VC}, 3, s72")
    a(f"v_mov_b32 v10, v{VM}")
    a(f"v_mov_b32 v11, v{VL}")
    a("s_mov_b32 exec_lo, 0x00030003")
    a("s_mov_b32 exec_hi, 0x00030003")
    for j in range(8):
        a(f"ds_write_b128 v8, {vr(VACC+4*j,4)} offset:{L_O+16*j}")
    a(f"ds_write_b64 v9, v[10:11] offset:{L_ML}")
    a("s_mov_b64 exec, -1")
    a("s_waitcnt vmcnt(0) lgkmcnt(0)")
    a("s_barrier")
    stamp(6)
    a("s_cmp_lt_u32 s3, 4")
    a("s_cbranch_scc0 L_nopub")
    a("s_and_b32 s72, s3, 1")
    a("s_lshl_b32 s72, s72, 6")
    a("v_add_u32 v6, s72, v0")
    a("v_lshrrev_b32 v7, 5, v6")
    a("v_bfe_u32 v8, v6, 3, 2")
    a("v_and_b32 v9, 7, v6")
    a("v_lshlrev_b32 v7, 5, v7")
    a("v_lshl_add_u32 v7, v9, 2, v7")
    a("v_add_u32 v7, v7, v8")
    a("s_lshr_b32 s91, s3, 1")
    a("s_lshl_b32 s72, s91, 9")
    a("v_lshl_add_u32 v7, v7, 2, s72")
    a("s_lshl_b32 s72, s91, 3")
    a("v_mov_b32 v8, s72")
    for w in range(8):
        a(f"ds_read_b64 v[{24+2*w}:{25+2*w}], v8 offset:{L_ML+16*w}")
    for w in range(8):
        a(f"ds_read_b32 v{16+w}, v7 offset:{L_O+1024*w}")
    a(f"s_mul_i32 s72, s81, {PART_STRIDE}")
    a(f"s_add_u32 s72, s72, {WS_PART}")
    a("s_lshl_b32 s78, s91, 10")
    a("v_lshl_add_u32 v6, v6, 3, s78")
    a("s_lshl_b32 s78, s91, 4")
    a("v_mov_b32 v7, s78")
    a(f"v_mov_b32 v13, s{STAG}")
    a(f"v_mov_b32 v41, s{STAG}")
    a(f"v_mov_b32 v43, s{STAG}")
    a("s_waitcnt lgkmcnt(8)")
    a("v_max3_f32 v40, v24, v26, v28")
    a("v_max3_f32 v40, v40, v30, v32")
    a("v_max3_f32 v40, v40, v34, v36")
    a("v_max_f32 v40, v40, v38")
    for w in range(8):
        a(f"v_sub_f32 v{24+2*w}, v{24+2*w}, v40")
    for w in range(8):
        a(f"v_mul_f32 v{24+2*w}, s87, v{24+2*w}")
    for w in range(8):
        a(f"v_exp_f32 v{24+2*w}, v{24+2*w}")
    a("s_waitcnt lgkmcnt(0)")
    a("v_mul_f32 v12, v16, v24")
    a("v_mul_f32 v42, v25, v24")
    for w in range(1, 8):
        a(f"v_fmac_f32 v12, v{16+w}, v{24+2*w}")
        a(f"v_fmac_f32 v42, v{25+2*w}, v{24+2*w}")
    a(f"buffer_store_dwordx2 v[12:13], v6, s[{SWS}:{SWS+3}], s72 offen sc1")
    a("s_mov_b64 exec, 1")
    a(f"buffer_store_dwordx4 v[40:43], v7, s[{SWS}:{SWS+3}], s72 offen offset:2048 sc1")
    a("s_mov_b64 exec, -1")
    a("L_nopub:")
    stamp(7)
    a(f"s_cmp_lt_u32 s68, {NCOMB}")
    a("s_cbranch_scc0 L_notcomb")
    a("s_cmp_lt_u32 s3, 5")
    a("s_cbranch_scc0 L_gather")
    a(f"v_mul_u32_u24 v46, 9216, v{VG}")
    a("s_lshl_b32 s72, s3, 4")
    a(f"v_add_u32 v47, s72, v{VC}")
    a("v_min_u32 v47, 71, v47")
    a("v_lshl_add_u32 v46, v47, 4, v46")
    a(f"v_add_u32 v46, {L_BLK}, v46")
    TMP = 48
    for ks in range(4):
        for i in range(8):
            a(f"ds_read_b128 v[{TMP+4*i}:{TMP+4*i+3}], v46 offset:{1152*i}")
        if ks < 3:
            a("v_add_u32 v46, 36864, v46")
        a("s_waitcnt lgkmcnt(0)")
        for j in range(8):
            if ks >= 2:
                perm_tile(a, TMP, VV + 32 * (ks - 2) + 4 * j, j)
            else:
                perm_tile(a, TMP, 8, j)
                for x in range(4):
                    a(f"v_accvgpr_write_b32 a{32*ks+4*j+x}, v{8+x}")
    selmasks(VC, 8)
    a("s_lshl_b32 s72, s3, 7")
    a(f"v_lshl_add_u32 v46, v{VG}, 5, s72")
    a("v_mov_b32 v8, 576")
    a("v_cmp_lt_u32 s[10:11], v46, v8")
    a("v_lshlrev_b32 v46, 4, v46")
    a(f"v_lshl_add_u32 v46, v{VC}, 3, v46")
    a("s_mul_i32 s72, s68, 9216")
    a(f"s_add_u32 s72, s72, {WS_YP}")
    a("v_and_b32 v47, 1, v0")
    a("v_lshlrev_b32 v47, 8, v47")
    a(f"v_lshl_add_u32 v47, v{VG}, 4, v47")
    for r in range(4):
        a(f"v_mov_b32 v{25+2*r}, s{STAG}")
    a("s_branch L_barD")
    a("L_gather:")
    a("s_cmp_lt_u32 s3, 7")
    a("s_cbranch_scc0 L_finish")
    a("s_sub_u32 s73, s3, 5")
    a(f"s_mov_b32 s91, {SPIN_MAX}")
    a("s_cmp_lt_u32 s68, 32")
    a("s_cbranch_scc0 L_gather_h")
    a("s_lshr_b32 s76, s68, 1")
    a("s_and_b32 s77, s68, 1")
    a("s_lshl_b32 s78, s73, 4")
    a("s_add_u32 s78, s78, s76")
    a(f"s_mul_i32 s78, s78, {8*PART_STRIDE}")
    a(f"s_add_u32 s78, s78, {WS_PART}")
    a("s_lshl_b32 s79, s77, 10")
    a("v_lshl_add_u32 v7, v0, 4, s79")
    a("s_lshl_b32 s79, s77, 4")
    a("s_add_u32 s79, s79, 2048")
    a("v_mov_b32 v8, s79")
    OB, MB = 48, 84
    a("L_pollp:")
    a("s_mov_b32 s72, s78")
    for s in range(8):
        a(f"buffer_load_dwordx4 v[{OB+4*s}:{OB+3+4*s}], v7, s[{SWS}:{SWS+3}], s72 offen sc1")
        a(f"buffer_load_dwordx4 v[{MB+4*s}:{MB+3+4*s}], v8, s[{SWS}:{SWS+3}], s72 offen sc1")
        if s < 7:
            a(f"s_add_u32 s72, s72, {PART_STRIDE}")
    a("s_waitcnt vmcnt(0)")
    tagfold([OB + 4*s + k for s in range(8) for k in (1, 3)] + [MB + 4*s + k for s in range(8) for k in (1, 3)], 9, 10)
    poll_tail("L_pollp", "L_pollp_done", 91)
    stamp(8)
    a(f"v_max3_f32 v2, v{MB}, v{MB+4}, v{MB+8}")
    a(f"v_max3_f32 v2, v2, v{MB+12}, v{MB+16}")
    a(f"v_max3_f32 v2, v2, v{MB+20}, v{MB+24}")
    a(f"v_max_f32 v2, v2, v{MB+28}")
    for s in range(8):
        a(f"v_sub_f32 v{MB+4*s}, v{MB+4*s}, v2")
    for s in range(8):
        a(f"v_mul_f32 v{MB+4*s}, s87, v{MB+4*s}")
    for s in range(8):
        a(f"v_exp_f32 v{MB+4*s}, v{MB+4*s}")
    a("s_nop 0")
    a(f"v_mul_f32 v3, v{OB}, v{MB}")
    a(f"v_mul_f32 v4, v{OB+2}, v{MB}")
    a(f"v_mul_f32 v5, v{MB+2}, v{MB}")
    for s in range(1, 8):
        a(f"v_fmac_f32 v3, v{OB+4*s}, v{MB+4*s}")
        a(f"v_fmac_f32 v4, v{OB+4*s+2}, v{MB+4*s}")
        a(f"v_fmac_f32 v5, v{MB+4*s+2}, v{MB+4*s}")
    a("v_rcp_f32 v6, v5")
    a("s_nop 0")
    for r in (3, 4):
        a(f"v_mul_f32 v9, v{r}, v6")
        a(f"v_fma_f32 v{r}, -v9, v5, v{r}")
        a(f"v_fma_f32 v{r}, v{r}, v6, v9")
    a("v_cvt_pk_bf16_f32 v3, v3, v4")
    a("s_lshl_b32 s79, s73, 8")
    a("v_lshl_add_u32 v6, v0, 2, s79")
    a(f"ds_write_b32 v6, v3 offset:{L_Z}")
    a("s_branch L_zdone")
    a("L_gather_h:")
    a("s_sub_u32 s76, s68, 32")
    a("s_mul_i32 s76, s76, 12288")
    a("s_lshl_b32 s78, s73, 10")
    a("s_add_u32 s78, s78, s76")
    a(f"s_add_u32 s78, s78, {WS_GP}")
    a("s_add_u32 s79, s78, 4096")
    a("s_add_u32 s80, s78, 8192")
    GB = 48
    a("L_pollh:")
    for i in range(6):
        a(f"buffer_load_dwordx4 v[{GB+4*i}:{GB+4*i+3}], v{VOV}, s[{SWS}:{SWS+3}], s{78 + i//2} offen offset:{2048*(i%2)} sc1")
    a("s_waitcnt vmcnt(0)")
    tagfold([GB + 4*i + k for i in range(6) for k in (1, 3)], 9, 10)
    poll_tail("L_pollh", "L_pollh_done", 91)
    for m in range(2):
        for k in (0, 2):
            r = GB + 12 * m + k
            a(f"v_add_f32 v{r}, v{r}, v{r+4}")
            a(f"v_add_f32 v{r}, v{r}, v{r+8}")
            bf16r(a, r)
    k0 = math.sqrt(2.0 / math.pi)
    a(f"v_mov_b32 v11, {f32(0.044715)}")
    for g in (GB, GB + 2):
        a(f"v_mul_f32 v10, v{g}, v{g}")
        a(f"v_mul_f32 v10, v10, v{g}")
        a(f"v_fma_f32 v10, v10, v11, v{g}")
        a(f"v_mul_f32 v10, {f32(-2.0*k0*LOG2E)}, v10")
        a("v_exp_f32 v10, v10")
        a("s_nop 0")
        a("v_add_f32 v10, 1.0, v10")
        a("v_rcp_f32 v10, v10")
        a("s_nop 0")
        a(f"v_mul_f32 v{g}, v{g}, v10")
        bf16r(a, g)
        a(f"v_mul_f32 v{g}, v{g}, v{g+12}")
        a(f"v_cvt_pk_bf16_f32 v{g}, v{g}, v{g}")
    a("s_lshl_b32 s79, s73, 7")
    a("v_lshl_add_u32 v6, v0, 1, s79")
    a(f"ds_write_b16 v6, v{GB} offset:{L_Z}")
    a(f"ds_write_b16 v6, v{GB+2} offset:{L_Z+256}")
    a("L_zdone:")
    a("s_waitcnt lgkmcnt(0)")
    a("s_barrier")
    a("s_branch L_finish")
    a("L_barD:")
    a("s_barrier")
    stamp(9)
    for ks in range(4):
        a(f"ds_read_b128 v[{8+4*ks}:{11+4*ks}], v47 offset:{L_Z + 64*ks}")
    DA = 48
    for ks in range(4):
        a(f"s_waitcnt lgkmcnt({3-ks})")
        for j in range(8):
            A = f"a[{32*ks+4*j}:{32*ks+4*j+3}]" if ks < 2 else vr(VV + 32*(ks-2) + 4*j, 4)
            c = "0" if ks == 0 else vr(DA + 4*j, 4)
            a(f"v_mfma_f32_16x16x32_bf16 {vr(DA+4*j,4)}, {A}, v[{8+4*ks}:{11+4*ks}], {c}")
    a("s_nop 7")
    seltree(DA, 24, 2)
    a("s_mov_b64 exec, s[10:11]")
    for r in range(4):
        a(f"buffer_store_dwordx2 v[{24+2*r}:{25+2*r}], v46, s[{SWS}:{SWS+3}], s72 offen offset:{128*r} sc1")
    a("s_mov_b64 exec, -1")
    stamp(10)
    a("s_branch L_finish")
    a("L_notcomb:")
    a("s_sub_u32 s73, s12, 4")
    a("s_lshl_b32 s73, s73, 5")
    a("s_add_u32 s73, s73, s84")
    a(f"s_cmp_lt_u32 s73, {NRED}")
    a("s_cbranch_scc0 L_finish")
    a("s_cmp_eq_u32 s3, 7")
    a("s_cbranch_scc0 L_finish")
    a("v_lshrrev_b32 v6, 3, v0")
    a("v_mul_u32_u24 v6, 9216, v6")
    a("v_and_b32 v7, 7, v0")
    a("s_lshl_b32 s72, s73, 3")
    a("v_add_u32 v7, s72, v7")
    a("v_lshl_add_u32 v6, v7, 4, v6")
    a("v_lshlrev_b32 v7, 1, v7")
    a(f"buffer_load_ushort v2, v7, s[{SX}:{SX+3}], 0 offen")
    a(f"buffer_load_ushort v3, v7, s[{SX}:{SX+3}], 0 offen offset:1152")
    a("v_cmp_gt_u32 vcc, 32, v0")
    a(f"v_mov_b32 v8, {OOB}")
    a("s_nop 0")
    a("v_cndmask_b32 v8, v8, v6, vcc")
    a(f"s_mov_b32 s91, {SPIN_MAX}")
    FB = 16
    a("L_pollf:")
    for i in range(5):
        a(f"s_mov_b32 s72, {WS_YP + 9216*(32+8*i)}")
        a(f"buffer_load_dwordx4 v[{FB+4*i}:{FB+4*i+3}], v{6 if i < 4 else 8}, s[{SWS}:{SWS+3}], s72 offen sc1")
    a("s_waitcnt vmcnt(0)")
    a(f"v_xor_b32 v9, s{STAG}, v{FB+17}")
    a(f"v_xor_b32 v10, s{STAG}, v{FB+19}")
    a("v_or_b32 v9, v9, v10")
    a("v_cndmask_b32 v9, 0, v9, vcc")
    tagfold([FB + 4*i + k for i in range(4) for k in (1, 3)], 9, 10, first=False)
    poll_tail("L_pollf", "L_pollf_done", 91)
    for i in range(1, 5):
        a(f"v_add_f32 v{FB}, v{FB}, v{FB+4*i}")
        a(f"v_add_f32 v{FB+2}, v{FB+2}, v{FB+4*i+2}")
    def red8(regs):
        a("s_nop 1")
        for r in regs:
            a(f"v_add_f32_dpp v{r}, v{r}, v{r} row_ror:8 row_mask:0xf bank_mask:0xf")
        for which in (16, 32):
            for k, r in enumerate(regs):
                a(f"v_mov_b32 v{10+k}, v{r}")
            a("s_nop 1")
            for k, r in enumerate(regs):
                a(f"v_permlane{which}_swap_b32 v{r}, v{10+k}")
            a("s_nop 1")
            for k, r in enumerate(regs):
                a(f"v_add_f32 v{r}, v{r}, v{10+k}")
    red8([FB, FB + 2])
    bf16r(a, FB); bf16r(a, FB + 2)
    a("v_lshlrev_b32 v2, 16, v2")
    a("v_lshlrev_b32 v3, 16, v3")
    YB = 40
    a(f"s_mov_b32 s91, {SPIN_MAX}")
    stamp(8)
    a("L_polly:")
    for i in range(4):
        a(f"s_mov_b32 s72, {WS_YP + 9216*(8*i)}")
        a(f"buffer_load_dwordx4 v[{YB+4*i}:{YB+4*i+3}], v6, s[{SWS}:{SWS+3}], s72 offen sc1")
    a("s_waitcnt vmcnt(0)")
    tagfold([YB + 4*i + k for i in range(4) for k in (1, 3)], 9, 10)
    poll_tail("L_polly", "L_polly_done", 91)
    stamp(9)
    for i in range(1, 4):
        a(f"v_add_f32 v{YB}, v{YB}, v{YB+4*i}")
        a(f"v_add_f32 v{YB+2}, v{YB+2}, v{YB+4*i+2}")
    red8([YB, YB + 2])
    bf16r(a, YB); bf16r(a, YB + 2)
    a(f"v_add_f32 v2, v2, v{YB}")
    a(f"v_add_f32 v3, v3, v{YB+2}")
    bf16r(a, 2); bf16r(a, 3)
    a(f"v_add_f32 v2, v2, v{FB}")
    a(f"v_add_f32 v3, v3, v{FB+2}")
    a("v_cvt_pk_bf16_f32 v2, v2, v2")
    a("v_cvt_pk_bf16_f32 v3, v3, v3")
    a("s_mov_b64 exec, 0xff")
    a(f"buffer_store_short v2, v7, s[{SOUT}:{SOUT+3}], 0 offen")
    a(f"buffer_store_short v3, v7, s[{SOUT}:{SOUT+3}], 0 offen offset:1152")
    a("s_cmp_eq_u32 s73, 0")
    a("s_cbranch_scc0 L_noepoch")
    a(f"s_sub_u32 s72, s{STAG}, {(TAGC - 1):#x}")
    a("v_mov_b32 v4, s72")
    a(f"v_mov_b32 v5, {WS_EPOCH}")
    a("s_mov_b64 exec, 1")
    a(f"buffer_store_dword v4, v5, s[{SWS}:{SWS+3}], 0 offen sc1")
    a("L_noepoch:")
    a("s_mov_b64 exec, -1")
    stamp(10)
    a("L_finish:")
    if ts:
        stamp(11)
        a("s_lshl_b32 s72, s2, 3")
        a("s_add_u32 s72, s72, s3")
        a("s_lshl_b32 s72, s72, 8")
        a(f"s_add_u32 s72, s72, {WS_TS}")
        a("v_lshlrev_b32 v2, 2, v0")
        a(f"buffer_store_dword v{VTS}, v2, s[{SWS}:{SWS+3}], s72 offen")
    a("L_end:")
    a("s_endpgm")
    out = HEADER
    out += f"; @launch grid=(256,1,1) block=(512,1,1) lds={LDS_SIZE}\n"
    out += '.amdgcn_target "amdgcn-amd-amdhsa--gfx950"\n.text\n'
    out += a.text()
    k = Asm()
    k('.section .rodata,"a"')
    k(".p2align 6")
    k.kd(NAME, NV + 64, NV)
    out += k.text()
    return out

if __name__ == "__main__":
    cfg = json.loads(sys.argv[2]) if len(sys.argv) > 2 else {}
    open(sys.argv[1], "w").write(gen(**cfg))
```

```python
import sys, math, json
from asmlib import *
from gen_v3 import rowsum16, xchg, bf16r, perm_tile, HEADER, NAME, LOG2E, SCALE
import gen_v3
SX, SK, SV, SWQ, SWO, SWG, SWU, SWD, SOUT, SWS = 28, 32, 36, 40, 44, 48, 52, 56, 60, 64
WS_EPOCH = 0
WS_CNT  = 0x4000
WS_QP   = 0x10000
WS_GP   = 0x50000
WS_PART = 0xC0000
PART_STRIDE = 2176
WS_YP   = 0x150000
WS_TS   = 0x300000
WS_SIZE = 0x400000
TAGC = 0x9E3779B9
OOB = 0x40000000
L_RED2 = 0
L_QL  = 6144
L_CNT = 6656
L_Z   = 6720
L_RED = 7424
L_XNB = L_RED + 4096
L_O   = 7424
L_ML  = L_O + 8192
L_BLK = 16384
LDS_SIZE = L_BLK + 147456
assert gen_v3.L_XNB == L_XNB
STAG = 90
SPIN_MAX = 1 << 20
NATT, NCOMB, NRED = 64, 100, 72

def role_table(pool, ea, ec, eg, par):
    tab = []
    for s in range(32):
        roles = []
        for p in range(8):
            comb = 255
            if p < 2: comb = 2 * s + p
            elif p == 2: comb = 64 + s
            elif p == 3 and s < 4: comb = 96 + s
            gu = 255
            if s >= 4:
                if p != 2: gu = 20 + 7 * (s - 4) + (p if p < 2 else p - 1)
            elif p == 1 or p >= 4: gu = 5 * s + (0 if p == 1 else p - 3)
            red = 255
            if p in (4, 5) or (p == 6 and s < 8): red = (p - 4) * 32 + s
            split = (p - s) & 7
            ex = (ea if comb < 64 else (ec if comb < 100 else 0)) + (eg if gu != 255 else 0) + (par if split % 2 == 0 else -par)
            roles.append([comb, gu, red, ex])
        tot = 1024 - pool + sum(r[3] for r in roles)
        cnt = [tot // 8 - r[3] for r in roles]
        i = 7
        while sum(cnt) < 1024 - pool:
            cnt[i] += 1; i -= 1
        base = [sum(cnt[:k]) for k in range(8)]
        for split in range(8):
            p = (split + s) & 7
            tab.append((base[p] | (cnt[p] << 16), roles[p][0] | (roles[p][1] << 8) | (roles[p][2] << 16)))
    gus = sorted((t[1] >> 8) & 255 for t in tab if ((t[1] >> 8) & 255) != 255)
    assert gus == list(range(216)), gus
    assert sorted(t[1] & 255 for t in tab if (t[1] & 255) != 255) == list(range(100))
    assert sorted((t[1] >> 16) & 255 for t in tab if ((t[1] >> 16) & 255) != 255) == list(range(72))
    return tab

def gen(ts=0, th=4, pool=24, ea=4, ec=8, eg=4, par=1, rott=32, nset1=2, nset2=3, lightq=1, psleep=0, nopool=0):
    a = Asm()
    a.kernel_begin(NAME)
    VTS = 159
    def stamp(i):
        if not ts: return
        if ts == 2 and i not in (0, 2, 4, 6, 11): return
        a("s_memrealtime s[100:101]")
        a("s_waitcnt lgkmcnt(0)")
        a(f"v_writelane_b32 v{VTS}, s100, {i}")
    def tagfold(regs, acc, tmp):
        regs = list(regs)
        a(f"v_xor_b32 v{acc}, s{STAG}, v{regs[0]}")
        rest = regs[1:]
        while rest:
            if len(rest) >= 2:
                a(f"v_xor_b32 v{tmp}, s{STAG}, v{rest[0]}")
                a(f"v_xor_b32 v{tmp+1}, s{STAG}, v{rest[1]}")
                a(f"v_or3_b32 v{acc}, v{acc}, v{tmp}, v{tmp+1}")
                rest = rest[2:]
            else:
                a(f"v_xor_b32 v{tmp}, s{STAG}, v{rest[0]}")
                a(f"v_or_b32 v{acc}, v{acc}, v{tmp}")
                rest = []
        a(f"v_cmp_ne_u32 s[92:93], 0, v{acc}")
    def poll(name, nsets, nloads, issue, check, post, sleep=0):
        a(f"s_mov_b32 s91, {SPIN_MAX}")
        for k in range(nsets): issue(k)
        a(f"{name}:")
        for k in range(nsets):
            a(f"s_waitcnt vmcnt({(nsets-1)*nloads})")
            check(k)
            a("s_nop 3")
            a("s_cmp_eq_u64 s[92:93], 0")
            a(f"s_cbranch_scc1 {name}_ok{k}")
            a("s_sub_u32 s91, s91, 1")
            a(f"s_cbranch_scc1 {name}_ok{k}")
            if sleep: a(f"s_sleep {sleep}")
            issue(k)
        a(f"s_branch {name}")
        for k in range(nsets):
            a(f"{name}_ok{k}:")
            post(k)
            if k < nsets - 1: a(f"s_branch {name}_done")
        a(f"{name}_done:")
    def selmasks(vc, vt):
        for k, sp in ((2, 4), (4, 6), (8, 8)):
            a(f"v_and_b32 v{vt}, {k}, v{vc}")
            a(f"v_cmp_ne_u32 s[{sp}:{sp+1}], 0, v{vt}")
    def seltree(DA, dst, dstep):
        for k in range(4):
            for r in range(4):
                a(f"v_cndmask_b32 v{DA+8*k+r}, v{DA+8*k+r}, v{DA+8*k+4+r}, s[4:5]")
        for k in range(2):
            for r in range(4):
                a(f"v_cndmask_b32 v{DA+16*k+r}, v{DA+16*k+r}, v{DA+16*k+8+r}, s[6:7]")
        for r in range(4):
            a(f"v_cndmask_b32 v{dst+dstep*r}, v{DA+r}, v{DA+16+r}, s[8:9]")
    VOK, VOV = 1, 2
    VM, VL, VAL, VT0 = 3, 4, 5, 6
    VS, VP, VPT, VQ, VACC, VV = 16, 24, 28, 36, 52, 84
    VCA, VONE, VG, VC = 148, 149, 150, 151
    VWA, VWM, VRA, VSA = 152, 153, 154, 155
    NV = 160
    AK = 0
    a("s_cmp_ge_u32 s2, 256")
    a("s_cbranch_scc1 L_end")
    a("s_load_dwordx16 s[4:19], s[0:1], 0")
    a("s_load_dwordx8 s[20:27], s[0:1], 64")
    a("s_getpc_b64 s[72:73]")
    a("L_pc:")
    a("s_add_u32 s72, s72, role_tab-L_pc")
    a("s_addc_u32 s73, s73, 0")
    a("s_lshl_b32 s74, s2, 3")
    a("s_load_dwordx2 s[68:69], s[72:73], s74")
    a("v_lshrrev_b32 v1, 6, v0")
    a("v_and_b32 v0, 63, v0")
    a("v_readfirstlane_b32 s3, v1")
    if ts: a(f"v_mov_b32 v{VTS}, 0")
    stamp(0)
    a("s_lshr_b32 s73, s2, 2")
    a("s_and_b32 s74, s2, 3")
    a("s_mul_i32 s75, s74, 144")
    a("s_mul_i32 s72, s3, 18")
    a("s_add_u32 s75, s75, s72")
    a("v_lshrrev_b32 v152, 3, v0")
    a("v_add_u32 v153, s75, v152")
    a("v_and_b32 v6, 7, v0")
    a("v_lshlrev_b32 v6, 4, v6")
    a("v_lshl_add_u32 v154, v153, 13, v6")
    a("v_cmp_gt_u32 vcc, 2, v152")
    a(f"v_mov_b32 v155, {OOB}")
    a("s_lshl_b32 s76, s73, 7")
    a("v_cndmask_b32 v155, v155, v154, vcc")
    a("s_add_u32 s77, s76, 65536")
    a("s_add_u32 s78, s76, 131072")
    a("v_lshrrev_b32 v156, 5, v0")
    a("v_mul_u32_u24 v156, 1152, v156")
    a("v_and_b32 v7, 31, v0")
    a("v_lshl_add_u32 v156, v7, 2, v156")
    a(f"v_lshrrev_b32 v{VG}, 4, v0")
    a(f"v_and_b32 v{VC}, 15, v0")
    a("v_and_b32 v6, 3, v0")
    a("v_lshlrev_b32 v6, 2, v6")
    a("v_bfe_u32 v7, v0, 2, 2")
    a("v_add_u32 v6, v6, v7")
    a("v_lshlrev_b32 v6, 8, v6")
    a(f"v_lshl_add_u32 v{VOK}, v{VG}, 4, v6")
    a(f"v_lshlrev_b32 v{VOV}, 4, v0")
    a("s_lshr_b32 s84, s2, 3")
    a("s_lshl_b32 s88, s84, 23")
    a(f"s_mul_i32 s85, s84, {rott}")
    a("s_waitcnt lgkmcnt(0)")
    a(f"s_load_dword s{STAG}, s[26:27], {WS_EPOCH}")
    a.srd(SX, 4, 2304)
    a.srd(SWQ, 10, 576 * 4096 * 2)
    VX, VF, VLT = 116, 126, 8
    VW = 36
    a("s_cmp_eq_u32 s3, 0")
    a("s_cbranch_scc0 L_nox")
    for i in range(9):
        a(f"buffer_load_dword v{VX+i}, v156, s[{SX}:{SX+3}], 0 offen offset:{128*i}")
    a("L_nox:")
    a(f"buffer_load_dwordx4 v[{VW}:{VW+3}], v154, s[{SWQ}:{SWQ+3}], s76 offen nt")
    a(f"buffer_load_dwordx4 v[{VW+4}:{VW+7}], v154, s[{SWQ}:{SWQ+3}], s77 offen nt")
    a(f"buffer_load_dwordx4 v[{VW+8}:{VW+11}], v155, s[{SWQ}:{SWQ+3}], s78 offen nt")
    a.srd(SK, 6, 1 << 28)
    a("s_and_b32 s89, s68, 0xffff")
    a("s_lshr_b32 s80, s68, 16")
    def tile_off(buf):
        su, so = 98 + buf, 94 + 2 * buf
        a(f"s_add_u32 s72, s{su}, s85")
        a("s_and_b32 s72, s72, 1023")
        a("s_lshl_b32 s72, s72, 13")
        a("s_add_u32 s72, s72, s88")
        a(f"s_cmp_lt_u32 s{su}, 1024")
        a(f"s_cselect_b32 s{so}, s72, {OOB}")
        a(f"s_add_u32 s{so+1}, s{so}, 4096")
    def kloads(buf):
        for t in range(2):
            for s in range(4):
                r = AK + 32 * buf + 16 * t + 4 * s
                a(f"buffer_load_dwordx4 a[{r}:{r+3}], v{VOK}, s[{SK}:{SK+3}], s{94+2*buf+t} offen offset:{64*s} nt")
    def vloads(buf):
        for i in range(8):
            r = VV + 32 * buf + 4 * i
            a(f"buffer_load_dwordx4 v[{r}:{r+3}], v{VOV}, s[{SV}:{SV+3}], s{94+2*buf+i//4} offen offset:{1024*(i%4)} nt")
    a("s_add_u32 s98, s89, s3")
    a("s_sub_u32 s98, s98, 1")
    a("s_add_u32 s99, s98, 7")
    a("s_cmp_eq_u32 s3, 0")
    a("s_cbranch_scc1 L_nok0")
    tile_off(0)
    kloads(0)
    a("L_nok0:")
    a.srd(SV, 8, 1 << 28)
    a.srd(SWG, 16, 576 * 4608 * 2)
    a.srd(SWU, 18, 576 * 4608 * 2)
    a.srd(SWO, 12, 4096 * 576 * 2)
    a.srd(SWD, 20, 4608 * 576 * 2)
    a.srd(SOUT, 22, 2304)
    a.srd(SWS, 26, WS_SIZE)
    a("s_lshl_b32 s72, s84, 8")
    a(f"s_add_u32 s72, s72, {WS_CNT}")
    a("s_add_u32 s70, s26, s72")
    a("s_addc_u32 s71, s27, 0")
    a("s_and_b32 s68, s69, 255")
    a("s_bfe_u32 s12, s69, 0x80010")
    a("s_bfe_u32 s69, s69, 0x80008")
    a("s_mov_b32 s19, 0x10000")
    if nopool:
        lo = NATT if nopool == 1 else 0
        a(f"s_sub_u32 s72, s68, {lo}")
        a(f"s_cmp_lt_u32 s72, {NCOMB - lo}")
        a("s_cselect_b32 s19, 0, s19")
    a("s_mov_b32 s82, 0x05040100")
    a("s_mov_b32 s83, 0x07060302")
    a(f"s_mov_b32 s86, {f32(SCALE)}")
    a(f"s_mov_b32 s87, {f32(LOG2E)}")
    a(f"v_mov_b32 v{VCA}, {L_CNT}")
    a(f"v_mov_b32 v{VONE}, 1")
    def dma_block(throttle):
        l1, l2 = a.label("L_dma_wd"), a.label("L_nodma")
        a(f"s_cmp_lt_u32 s68, {NCOMB}")
        a(f"s_cbranch_scc0 {l2}")
        a(f"s_cmp_lt_u32 s68, {NATT}")
        a(f"s_cbranch_scc0 {l1}")
        for which in (0, 1):
            srd = SWO if which == 0 else SWD
            n = 9 if which == 0 else 18
            if which == 1:
                a(f"{l1}:")
                a(f"s_sub_u32 s91, s68, {NATT}")
                a("s_mul_i32 s91, s91, 147456")
            else:
                a("s_mul_i32 s91, s68, 73728")
            a(f"s_mul_i32 s72, s3, {1024*n}")
            a("s_add_u32 s91, s91, s72")
            for i in range(n):
                if i % 4 == 0:
                    if throttle is not None and i % 8 == 0: a(f"s_waitcnt vmcnt({throttle})")
                    a(f"s_add_u32 m0, s72, {L_BLK + 1024*i}")
                    a(f"s_add_u32 s78, s91, {1024*i}")
                a(f"buffer_load_dwordx4 v{VOV}, s[{srd}:{srd+3}], s78 offen offset:{1024*(i%4)} nt lds")
            if which == 0:
                a(f"s_branch {l2}")
        a(f"{l2}:")
    a("s_cmp_eq_u32 s3, 0")
    a("s_cbranch_scc0 L_A0")
    a("s_and_b32 s72, s2, 15")
    a("s_cmp_lt_u32 s72, 2")
    a("s_cbranch_scc0 L_noinit")
    a("s_lshl_b32 s72, s72, 4")
    a("s_lshr_b32 s91, s2, 4")
    a("s_add_u32 s72, s72, s91")
    a("s_lshl_b32 s72, s72, 8")
    a(f"s_add_u32 s72, s72, {WS_CNT}")
    a(f"v_mov_b32 v6, {1024-pool}")
    a("v_mov_b32 v7, 0")
    a("s_mov_b64 exec, 1")
    a(f"buffer_store_dword v6, v7, s[{SWS}:{SWS+3}], s72 offen sc1")
    a("s_mov_b64 exec, -1")
    a("L_noinit:")
    a("s_waitcnt vmcnt(3)")
    stamp(1)
    gen_v3.ln_compute(a, VX, VF, VLT)
    a("v_mov_b32 v6, 16")
    a(f"ds_write_b32 v{VCA}, v6")
    a("s_waitcnt vmcnt(0) lgkmcnt(0)")
    a("L_A0:")
    a("v_add_u32 v6, 8, v153")
    a("v_add_u32 v7, 16, v153")
    a("v_min_u32 v7, 575, v7")
    a("v_lshlrev_b32 v153, 1, v153")
    a("v_lshlrev_b32 v6, 1, v6")
    a("v_lshlrev_b32 v7, 1, v7")
    a("s_barrier")
    XR = 8
    for i, r in enumerate((153, 6, 7)):
        a(f"ds_read_u16 v{XR+2*i}, v{r} offset:{L_XNB}")
        a(f"ds_read_u16 v{XR+2*i+1}, v{r} offset:{L_XNB+1152}")
    a("s_waitcnt lgkmcnt(0)")
    a(f"s_add_u32 s{STAG}, s{STAG}, {TAGC:#x}")
    for i in range(6):
        a(f"v_lshlrev_b32 v{XR+i}, 16, v{XR+i}")
    a("s_waitcnt vmcnt(8)")
    QA = 16
    for i in range(3):
        for w in range(4):
            a(f"v_lshlrev_b32 v14, 16, v{VW+4*i+w}")
            a(f"v_and_b32 v15, 0xffff0000, v{VW+4*i+w}")
            op = "v_mul_f32" if i == 0 else "v_fmac_f32"
            a(f"{op} v{QA+2*w}, v14, v{XR+2*i}")
            a(f"{op} v{QA+2*w+1}, v15, v{XR+2*i}")
            a(f"{op} v{QA+8+2*w}, v14, v{XR+2*i+1}")
            a(f"{op} v{QA+8+2*w+1}, v15, v{XR+2*i+1}")
    a("s_nop 1")
    for k in range(8):
        a(f"v_permlane32_swap_b32 v{QA+k}, v{QA+8+k}")
    a("s_nop 1")
    for k in range(8):
        a(f"v_add_f32 v{QA+k}, v{QA+k}, v{QA+8+k}")
    a("s_nop 1")
    for k in range(4):
        a(f"v_permlane16_swap_b32 v{QA+k}, v{QA+4+k}")
    a("s_nop 1")
    for k in range(4):
        a(f"v_add_f32 v{QA+k}, v{QA+k}, v{QA+4+k}")
    a("s_nop 1")
    for k in range(4):
        a(f"v_add_f32_dpp v{QA+k}, v{QA+k}, v{QA+k} row_ror:8 row_mask:0xf bank_mask:0xf")
    a("v_lshrrev_b32 v6, 5, v0")
    a("v_lshlrev_b32 v6, 8, v6")
    a("v_and_b32 v7, 7, v0")
    a("v_lshl_add_u32 v6, v7, 5, v6")
    a("v_bfe_u32 v7, v0, 4, 1")
    a("v_lshl_add_u32 v6, v7, 4, v6")
    a("s_lshl_b32 s72, s3, 9")
    a("v_add_u32 v6, s72, v6")
    a(f"ds_write_b128 v6, v[{QA}:{QA+3}] offset:{L_RED}")
    a("s_waitcnt lgkmcnt(0)")
    a("s_barrier")
    stamp(2)
    a("s_cmp_eq_u32 s3, 0")
    a("s_cbranch_scc0 L_prefetch")
    a("v_lshlrev_b32 v6, 3, v0")
    for w in range(8):
        a(f"ds_read_b64 v[{16+2*w}:{17+2*w}], v6 offset:{L_RED + 512*w}")
    a("v_lshrrev_b32 v6, 5, v0")
    a("v_lshlrev_b32 v6, 15, v6")
    a("v_and_b32 v7, 31, v0")
    a("v_lshl_add_u32 v6, v7, 4, v6")
    a("s_lshl_b32 s72, s74, 16")
    a("s_lshl_b32 s91, s73, 9")
    a("s_add_u32 s72, s72, s91")
    a(f"s_add_u32 s72, s72, {WS_QP}")
    a(f"v_mov_b32 v9, s{STAG}")
    a(f"v_mov_b32 v11, s{STAG}")
    a("s_waitcnt lgkmcnt(0)")
    a("v_add_f32 v8, v16, v18")
    a("v_add_f32 v10, v17, v19")
    for w in range(2, 8):
        a(f"v_add_f32 v8, v8, v{16+2*w}")
        a(f"v_add_f32 v10, v10, v{17+2*w}")
    a(f"buffer_store_dwordx4 v[8:11], v6, s[{SWS}:{SWS+3}], s72 offen sc1")
    stamp(3)
    a("s_lshr_b32 s72, s84, 4")
    a("s_lshl_b32 s72, s72, 15")
    a("s_and_b32 s91, s84, 15")
    a("s_lshl_b32 s91, s91, 11")
    a("s_add_u32 s72, s72, s91")
    a(f"s_add_u32 s76, s72, {WS_QP}")
    for rb in range(1, 4):
        a(f"s_add_u32 s{76+rb}, s76, {65536*rb}")
    if lightq:
        a("v_and_b32 v6, 3, v0")
        a("v_lshlrev_b32 v6, 16, v6")
        a("v_bfe_u32 v7, v0, 2, 2")
        a("v_lshl_add_u32 v6, v7, 9, v6")
        poll("L_pollq0", 1, 1,
             lambda k: a(f"buffer_load_dwordx2 v[12:13], v6, s[{SWS}:{SWS+3}], s76 offen sc1"),
             lambda k: a(f"v_cmp_ne_u32 s[92:93], s{STAG}, v13"),
             lambda k: None, sleep=4)
    PB = 16
    def q_issue(k):
        for rb in range(4):
            for h in range(2):
                r = PB + 8 * rb + 4 * h
                a(f"buffer_load_dwordx4 v[{r}:{r+3}], v{VOV}, s[{SWS}:{SWS+3}], s{76+rb} offen offset:{1024*h} sc1")
    poll("L_pollq", 1, 8, q_issue, lambda k: tagfold([PB + 4*i + kk for i in range(8) for kk in (1, 3)], 9, 10), lambda k: None, sleep=4)
    for h in range(2):
        for k in (0, 2):
            r = PB + 4 * h + k
            a(f"v_add_f32 v{r}, v{r}, v{r+8}")
            a(f"v_add_f32 v{r+16}, v{r+16}, v{r+24}")
            a(f"v_add_f32 v{r}, v{r}, v{r+16}")
        a(f"v_cvt_pk_bf16_f32 v{8+h}, v{PB+4*h}, v{PB+4*h+2}")
    a("v_lshlrev_b32 v6, 2, v0")
    a(f"ds_write_b32 v6, v8 offset:{L_QL}")
    a(f"ds_write_b32 v6, v9 offset:{L_QL+256}")
    a("s_waitcnt lgkmcnt(0)")
    stamp(12)
    a("s_branch L_B")
    a("L_prefetch:")
    a("s_mul_i32 s74, s69, 171")
    a("s_lshr_b32 s74, s74, 9")
    a("s_mul_i32 s72, s74, 3")
    a("s_sub_u32 s75, s69, s72")
    a("s_cmp_lt_u32 s69, 216")
    a("s_cselect_b32 s79, 1, 0")
    a("s_cmp_lt_u32 s3, 7")
    a("s_cselect_b32 s79, s79, 0")
    a("s_cmp_eq_u32 s79, 0")
    a("s_cbranch_scc1 L_nogu1")
    a("s_mul_i32 s76, s75, 192")
    a("s_lshl_b32 s72, s3, 5")
    a("s_add_u32 s76, s76, s72")
    a("s_sub_u32 s76, s76, 32")
    a(f"v_lshl_add_u32 v6, v{VG}, 3, s76")
    a("v_mul_u32_u24 v7, 9216, v6")
    a(f"v_lshl_add_u32 v7, v{VC}, 4, v7")
    a("s_lshr_b32 s77, s74, 1")
    a("s_lshl_b32 s77, s77, 8")
    a("v_and_b32 v8, 1, v0")
    a("v_mul_u32_u24 v8, 1152, v8")
    a("v_lshl_add_u32 v8, v6, 1, v8")
    a(f"ds_read_b128 v[12:15], v8 offset:{L_XNB}")
    a(f"s_waitcnt vmcnt({th})")
    a("s_bitcmp1_b32 s74, 0")
    a("s_cbranch_scc1 L_gu_up")
    for which, srd in ((0, SWG), (1, SWU)):
        if which: a("L_gu_up:")
        for i in range(8):
            a(f"buffer_load_dwordx4 v[{VACC+4*i}:{VACC+4*i+3}], v7, s[{srd}:{srd+3}], s77 offen nt")
            if i < 7: a("s_add_u32 s77, s77, 9216")
        if not which: a("s_branch L_nogu1")
    a("L_nogu1:")
    a(f"s_waitcnt vmcnt({th})")
    vloads(0)
    a("s_cmp_eq_u32 s79, 0")
    a("s_cbranch_scc1 L_nogu2")
    selmasks(VC, 6)
    a("s_waitcnt vmcnt(8) lgkmcnt(0)")
    DA = 16
    for j in range(8):
        tb = 8 if (j & 1) else 48
        perm_tile(a, VACC, tb, j)
        a("s_nop 1")
        a(f"v_mfma_f32_16x16x32_bf16 {vr(DA+4*j,4)}, {vr(tb,4)}, v[12:15], 0")
    a("s_lshl_b32 s72, s3, 10")
    a("s_sub_u32 s72, s72, 1024")
    a(f"v_add_u32 v6, s72, v{VOV}")
    a("s_nop 7")
    seltree(DA, 8, 1)
    a(f"ds_write_b128 v6, v[8:11] offset:{L_RED2}")
    a("L_nogu2:")
    a(f"s_waitcnt vmcnt({th})")
    tile_off(1)
    kloads(1)
    a(f"s_waitcnt vmcnt({th})")
    vloads(1)
    dma_block(th)
    a("s_waitcnt lgkmcnt(0)")
    stamp(3)
    a("L_B:")
    a("s_barrier")
    stamp(4)
    a("v_and_b32 v6, 1, v0")
    a("v_lshlrev_b32 v6, 8, v6")
    a(f"v_lshl_add_u32 v6, v{VG}, 4, v6")
    for s in range(4):
        a(f"ds_read_b128 v[{VQ+4*s}:{VQ+4*s+3}], v6 offset:{L_QL + 64*s}")
    a("s_cmp_eq_u32 s3, 0")
    a("s_cbranch_scc0 L_w0_done")
    a("s_add_u32 s98, s89, 14")
    a("s_add_u32 s99, s89, 15")
    tile_off(0)
    kloads(0)
    vloads(0)
    tile_off(1)
    kloads(1)
    vloads(1)
    dma_block(None)
    a("L_w0_done:")
    a("s_cmp_eq_u32 s3, 7")
    a("s_cbranch_scc0 L_nogu3")
    a("s_cmp_lt_u32 s69, 216")
    a("s_cbranch_scc0 L_nogu3")
    for w in range(6):
        a(f"ds_read_b128 v[{VACC+4*w}:{VACC+4*w+3}], v{VOV} offset:{L_RED2 + 1024*w}")
    a(f"v_lshlrev_b32 v6, 9, v{VG}")
    a(f"v_lshl_add_u32 v6, v{VC}, 3, v6")
    a("s_lshl_b32 s72, s69, 11")
    a(f"s_add_u32 s72, s72, {WS_GP}")
    a("s_waitcnt lgkmcnt(0)")
    for w in range(1, 6):
        for r in range(4):
            a(f"v_add_f32 v{VACC+r}, v{VACC+r}, v{VACC+4*w+r}")
    for r in range(4):
        a(f"v_mov_b32 v{8+2*r}, v{VACC+r}")
        a(f"v_mov_b32 v{9+2*r}, s{STAG}")
    for r in range(4):
        a(f"buffer_store_dwordx2 v[{8+2*r}:{9+2*r}], v6, s[{SWS}:{SWS+3}], s72 offen offset:{128*r} sc1")
    a("L_nogu3:")
    a(f"v_lshl_add_u32 v{VWA}, v{VC}, 2, v{VG}")
    a(f"v_lshlrev_b32 v{VWA}, 7, v{VWA}")
    a("s_lshl_b32 s72, s3, 10")
    a(f"v_add_u32 v{VWA}, s72, v{VWA}")
    a("s_lshl_b32 s72, s3, 4")
    a(f"v_lshl_add_u32 v{VWM}, v{VC}, 3, s72")
    a("s_and_b32 s72, s3, 1")
    a("s_lshl_b32 s72, s72, 6")
    a("v_add_u32 v6, s72, v0")
    a("v_lshrrev_b32 v7, 5, v6")
    a("v_bfe_u32 v16, v6, 3, 2")
    a("v_and_b32 v17, 7, v6")
    a("v_lshlrev_b32 v7, 5, v7")
    a("v_lshl_add_u32 v7, v17, 2, v7")
    a("v_add_u32 v7, v7, v16")
    a("s_bfe_u32 s13, s3, 0x10001")
    a("s_lshl_b32 s72, s13, 9")
    a(f"v_lshl_add_u32 v{VRA}, v7, 2, s72")
    a("s_lshl_b32 s72, s13, 10")
    a(f"v_lshl_add_u32 v{VSA}, v6, 3, s72")
    a(f"s_mul_i32 s81, s2, {PART_STRIDE}")
    a(f"s_add_u32 s81, s81, {WS_PART}")
    for i in range(32):
        a(f"v_mov_b32 v{VACC+i}, 0")
    a(f"v_mov_b32 v{VM}, 0xf149f2ca")
    a(f"v_mov_b32 v{VL}, 0")
    a("s_waitcnt lgkmcnt(0)")
    a("L_loop:")
    for buf in range(2):
        a(f"s_cmp_ge_u32 s{98+buf}, 1024")
        a("s_cbranch_scc1 L_loop_done")
        lt = a.label("L_have")
        a("s_mov_b64 exec, 1")
        a(f"ds_add_rtn_u32 v15, v{VCA}, v{VONE}")
        a("s_mov_b64 exec, -1")
        a("s_waitcnt vmcnt(24)")
        for s in range(4):
            for t in range(2):
                r = AK + 32 * buf + 16 * t + 4 * s
                c = "0" if s == 0 else vr(VS + 4 * t, 4)
                a(f"v_mfma_f32_16x16x32_bf16 {vr(VS+4*t,4)}, a[{r}:{r+3}], {vr(VQ+4*s,4)}, {c}")
        a("s_waitcnt lgkmcnt(0)")
        a("v_readfirstlane_b32 s72, v15")
        a("s_nop 3")
        a(f"s_add_u32 s{98+buf}, s72, s89")
        a("s_cmp_lt_u32 s72, s80")
        a(f"s_cbranch_scc1 {lt}")
        a(f"s_mov_b32 s{98+buf}, 1024")
        if pool:
            a("s_cmp_ge_u32 s72, s19")
            a(f"s_cbranch_scc1 {lt}")
            a(f"s_mov_b32 s{98+buf}, 1")
            a(f"s_atomic_add s{98+buf}, s[70:71], 0 glc")
            a("s_waitcnt lgkmcnt(0)")
            a(f"s_cmp_lt_u32 s{98+buf}, 1024")
            a(f"s_cbranch_scc1 {lt}")
            a("v_mov_b32 v15, 0x10000")
            a("s_mov_b64 exec, 1")
            a(f"ds_add_u32 v{VCA}, v15")
            a("s_mov_b64 exec, -1")
        a(f"{lt}:")
        tile_off(buf)
        kloads(buf)
        T = VT0
        for x in range(4):
            a(f"v_cvt_pk_bf16_f32 v{T+x}, v{VS+2*x}, v{VS+2*x+1}")
        for x in range(4):
            a(f"v_lshlrev_b32 v{VS+2*x}, 16, v{T+x}")
            a(f"v_and_b32 v{VS+2*x+1}, 0xffff0000, v{T+x}")
        for x in range(8):
            a(f"v_mul_f32 v{VS+x}, s86, v{VS+x}")
        for x in range(4):
            a(f"v_cvt_pk_bf16_f32 v{T+x}, v{VS+2*x}, v{VS+2*x+1}")
        for x in range(4):
            a(f"v_lshlrev_b32 v{VS+2*x}, 16, v{T+x}")
            a(f"v_and_b32 v{VS+2*x+1}, 0xffff0000, v{T+x}")
        a(f"v_max3_f32 v{T}, v{VS}, v{VS+1}, v{VS+2}")
        a(f"v_max3_f32 v{T+1}, v{VS+3}, v{VS+4}, v{VS+5}")
        a(f"v_max3_f32 v{T}, v{T}, v{VS+6}, v{VS+7}")
        a(f"v_max3_f32 v{T}, v{T}, v{T+1}, v{VM}")
        xchg(a, T, T + 1, 16, "max")
        xchg(a, T, T + 1, 32, "max")
        a(f"v_sub_f32 v{VAL}, v{VM}, v{T}")
        a(f"v_mul_f32 v{VAL}, s87, v{VAL}")
        a(f"v_exp_f32 v{VAL}, v{VAL}")
        a(f"v_mov_b32 v{VM}, v{T}")
        a(f"v_mul_f32 v{T+1}, s87, v{T}")
        for x in range(8):
            a(f"v_fma_f32 v{VS+x}, v{VS+x}, s87, -v{T+1}")
        for x in range(8):
            a(f"v_exp_f32 v{VS+x}, v{VS+x}")
        a(f"v_cmp_neq_f32 vcc, 1.0, v{VAL}")
        a(f"v_mul_f32 v{VL}, v{VL}, v{VAL}")
        for x in range(4):
            a(f"v_cvt_pk_bf16_f32 v{VP+x}, v{VS+2*x}, v{VS+2*x+1}")
        a(f"v_add_f32 v{T}, v{VS}, v{VS+1}")
        a(f"v_add_f32 v{T+1}, v{VS+2}, v{VS+3}")
        a(f"v_add_f32 v{T+2}, v{VS+4}, v{VS+5}")
        a(f"v_add_f32 v{T+3}, v{VS+6}, v{VS+7}")
        a(f"v_add_f32 v{T}, v{T}, v{T+1}")
        a(f"v_add_f32 v{T+2}, v{T+2}, v{T+3}")
        a(f"v_add_f32 v{T}, v{T}, v{T+2}")
        a(f"v_add_f32 v{VL}, v{VL}, v{T}")
        lab = a.label("L_noscale")
        a(f"s_cbranch_vccz {lab}")
        for i in range(32):
            a(f"v_mul_f32 v{VACC+i}, v{VACC+i}, v{VAL}")
        a(f"{lab}:")
        a("s_waitcnt vmcnt(24)")
        for j in range(8):
            tb = VPT + 4 * (j & 1)
            perm_tile(a, VV + 32 * buf, tb, j)
            a("s_nop 1")
            a(f"v_mfma_f32_16x16x32_bf16 {vr(VACC+4*j,4)}, {vr(tb,4)}, {vr(VP,4)}, {vr(VACC+4*j,4)}")
        vloads(buf)
    a("s_branch L_loop")
    a("L_loop_done:")
    stamp(5)
    a("s_mov_b32 exec_lo, 0x00030003")
    a("s_mov_b32 exec_hi, 0x00030003")
    for j in range(8):
        a(f"ds_write_b128 v{VWA}, {vr(VACC+4*j,4)} offset:{L_O+16*j}")
    a("s_mov_b64 exec, -1")
    xchg(a, VL, VT0, 16)
    xchg(a, VL, VT0, 32)
    a(f"v_mov_b32 v10, v{VM}")
    a(f"v_mov_b32 v11, v{VL}")
    a("s_mov_b64 exec, 3")
    a(f"ds_write_b64 v{VWM}, v[10:11] offset:{L_ML}")
    a("s_mov_b64 exec, -1")
    a("s_lshl_b32 s72, s13, 3")
    a("v_mov_b32 v8, s72")
    a("s_lshl_b32 s72, s13, 4")
    a("v_mov_b32 v7, s72")
    a(f"v_mov_b32 v13, s{STAG}")
    a(f"v_mov_b32 v41, s{STAG}")
    a(f"v_mov_b32 v43, s{STAG}")
    a("s_waitcnt vmcnt(0) lgkmcnt(0)")
    a("s_barrier")
    stamp(6)
    a("s_cmp_lt_u32 s3, 4")
    a("s_cbranch_scc0 L_nopub")
    for w in range(8):
        a(f"ds_read_b64 v[{24+2*w}:{25+2*w}], v8 offset:{L_ML+16*w}")
    for w in range(8):
        a(f"ds_read_b32 v{16+w}, v{VRA} offset:{L_O+1024*w}")
    a("s_waitcnt lgkmcnt(8)")
    a("v_max3_f32 v40, v24, v26, v28")
    a("v_max3_f32 v9, v30, v32, v34")
    a("v_max3_f32 v40, v40, v36, v38")
    a("v_max_f32 v40, v40, v9")
    a("v_mul_f32 v9, s87, v40")
    for w in range(8):
        a(f"v_fma_f32 v{24+2*w}, v{24+2*w}, s87, -v9")
    for w in range(8):
        a(f"v_exp_f32 v{24+2*w}, v{24+2*w}")
    a("s_waitcnt lgkmcnt(0)")
    a("v_mul_f32 v12, v16, v24")
    a("v_mul_f32 v14, v17, v26")
    for w in range(2, 8, 2):
        a(f"v_fmac_f32 v12, v{16+w}, v{24+2*w}")
        a(f"v_fmac_f32 v14, v{17+w}, v{26+2*w}")
    a("v_add_f32 v12, v12, v14")
    a(f"buffer_store_dwordx2 v[12:13], v{VSA}, s[{SWS}:{SWS+3}], s81 offen sc1")
    a("v_mul_f32 v42, v25, v24")
    for w in range(1, 8):
        a(f"v_fmac_f32 v42, v{25+2*w}, v{24+2*w}")
    a("s_mov_b64 exec, 1")
    a(f"buffer_store_dwordx4 v[40:43], v7, s[{SWS}:{SWS+3}], s81 offen offset:2048 sc1")
    a("s_mov_b64 exec, -1")
    a("L_nopub:")
    stamp(7)
    a(f"s_cmp_lt_u32 s68, {NCOMB}")
    a("s_cbranch_scc0 L_notcomb")
    a("s_cmp_eq_u32 s3, 7")
    a("s_cbranch_scc1 L_finish")
    a("s_and_b32 s72, s3, 6")
    a("s_cmp_eq_u32 s72, 4")
    a("s_cbranch_scc1 L_gather")
    a("s_min_u32 s73, s3, 4")
    a(f"v_mul_u32_u24 v46, 9216, v{VG}")
    a("s_lshl_b32 s72, s73, 4")
    a(f"v_add_u32 v47, s72, v{VC}")
    a("v_min_u32 v47, 71, v47")
    a("v_lshl_add_u32 v46, v47, 4, v46")
    a(f"v_add_u32 v46, {L_BLK}, v46")
    TMP = 48
    def prep(ks):
        for i in range(8):
            a(f"ds_read_b128 v[{TMP+4*i}:{TMP+4*i+3}], v46 offset:{1152*i}")
        a("v_add_u32 v46, 36864, v46")
        a("s_waitcnt lgkmcnt(0)")
        for j in range(8):
            if ks < 2:
                perm_tile(a, TMP, VV + 32 * ks + 4 * j, j)
            else:
                perm_tile(a, TMP, 8, j)
                for x in range(4):
                    a(f"v_accvgpr_write_b32 a{32*(ks-2)+4*j+x}, v{8+x}")
    prep(0); prep(1)
    a(f"s_cmp_lt_u32 s68, {NATT}")
    a("s_cbranch_scc1 L_prep_done")
    prep(2); prep(3)
    a("L_prep_done:")
    selmasks(VC, 8)
    a("s_lshl_b32 s72, s73, 7")
    a(f"v_lshl_add_u32 v46, v{VG}, 5, s72")
    a("v_mov_b32 v8, 576")
    a("v_cmp_lt_u32 s[10:11], v46, v8")
    a("v_lshlrev_b32 v46, 4, v46")
    a(f"v_lshl_add_u32 v46, v{VC}, 3, v46")
    a("s_mul_i32 s72, s68, 9216")
    a(f"s_add_u32 s72, s72, {WS_YP}")
    a("v_and_b32 v47, 1, v0")
    a("v_lshlrev_b32 v47, 8, v47")
    a(f"v_lshl_add_u32 v47, v{VG}, 4, v47")
    for r in range(4):
        a(f"v_mov_b32 v{25+2*r}, s{STAG}")
    a("s_barrier")
    stamp(9)
    for ks in range(4):
        a(f"ds_read_b128 v[{8+4*ks}:{11+4*ks}], v47 offset:{L_Z + 64*ks}")
    DA = 48
    def mm(ks):
        a(f"s_waitcnt lgkmcnt({3-ks})")
        for j in range(8):
            A = f"a[{32*(ks-2)+4*j}:{32*(ks-2)+4*j+3}]" if ks >= 2 else vr(VV + 32*ks + 4*j, 4)
            c = "0" if ks == 0 else vr(DA + 4*j, 4)
            a(f"v_mfma_f32_16x16x32_bf16 {vr(DA+4*j,4)}, {A}, v[{8+4*ks}:{11+4*ks}], {c}")
    mm(0); mm(1)
    a(f"s_cmp_lt_u32 s68, {NATT}")
    a("s_cbranch_scc1 L_mm_done")
    mm(2); mm(3)
    a("L_mm_done:")
    a("s_nop 6")
    seltree(DA, 24, 2)
    a("s_mov_b64 exec, s[10:11]")
    for r in range(4):
        a(f"buffer_store_dwordx2 v[{24+2*r}:{25+2*r}], v46, s[{SWS}:{SWS+3}], s72 offen offset:{128*r} sc1")
    a("s_mov_b64 exec, -1")
    stamp(10)
    a("s_branch L_finish")
    a("L_gather:")
    a("s_sub_u32 s73, s3, 4")
    a(f"s_cmp_lt_u32 s68, {NATT}")
    a("s_cbranch_scc0 L_gather_h")
    a("s_lshr_b32 s76, s68, 2")
    a("s_lshl_b32 s78, s73, 4")
    a("s_add_u32 s78, s78, s76")
    a(f"s_mul_i32 s78, s78, {8*PART_STRIDE}")
    a(f"s_add_u32 s20, s78, {WS_PART}")
    for s in range(1, 8):
        a(f"s_add_u32 s{20+s}, s20, {PART_STRIDE*s}")
    a("s_and_b32 s79, s68, 3")
    a("s_lshl_b32 s79, s79, 9")
    a("v_lshl_add_u32 v7, v0, 3, s79")
    a("s_bfe_u32 s79, s68, 0x10001")
    a("s_lshl_b32 s79, s79, 4")
    a("s_add_u32 s79, s79, 2048")
    a("v_and_b32 v8, 7, v0")
    a(f"v_mul_u32_u24 v8, {PART_STRIDE}, v8")
    a("v_add_u32 v8, s79, v8")
    a("s_lshl_b32 s79, s73, 8")
    a("v_lshl_add_u32 v6, v0, 1, s79")
    GS = lambda k: 48 + 20 * k
    def g_issue(k):
        a(f"buffer_load_dwordx4 v[{GS(k)}:{GS(k)+3}], v8, s[{SWS}:{SWS+3}], s20 offen sc1")
        for s in range(8):
            a(f"buffer_load_dwordx2 v[{GS(k)+4+2*s}:{GS(k)+5+2*s}], v7, s[{SWS}:{SWS+3}], s{20+s} offen sc1")
    def g_check(k):
        tagfold([GS(k) + 1, GS(k) + 3] + [GS(k) + 5 + 2*s for s in range(8)], 9, 10)
    def g_post(k):
        B = GS(k)
        a(f"v_mov_b32 v2, v{B}")
        for m in ("quad_perm:[1,0,3,2]", "quad_perm:[2,3,0,1]", "row_half_mirror"):
            a("s_nop 1")
            a(f"v_max_f32_dpp v2, v2, v2 {m} row_mask:0xf bank_mask:0xf")
        a(f"v_sub_f32 v3, v{B}, v2")
        a("v_mul_f32 v3, s87, v3")
        a("v_exp_f32 v3, v3")
        a("s_nop 0")
        a(f"v_mul_f32 v4, v3, v{B+2}")
        for m in ("quad_perm:[1,0,3,2]", "quad_perm:[2,3,0,1]", "row_half_mirror"):
            a("s_nop 1")
            a(f"v_add_f32_dpp v4, v4, v4 {m} row_mask:0xf bank_mask:0xf")
        for s in range(8):
            a(f"v_readlane_b32 s{4+s}, v3, {s}")
        a("v_rcp_f32 v5, v4")
        a(f"v_mul_f32 v2, s4, v{B+4}")
        a(f"v_mul_f32 v9, s5, v{B+6}")
        for s in range(2, 8, 2):
            a(f"v_fmac_f32 v2, s{4+s}, v{B+4+2*s}")
            a(f"v_fmac_f32 v9, s{5+s}, v{B+6+2*s}")
    poll("L_pollp", nset1, 9, g_issue, g_check, g_post, sleep=psleep)
    stamp(8)
    a("v_add_f32 v3, v2, v9")
    a("v_mul_f32 v9, v3, v5")
    a("v_fma_f32 v3, -v9, v4, v3")
    a("v_fma_f32 v3, v3, v5, v9")
    a("v_cvt_pk_bf16_f32 v3, v3, v3")
    a(f"ds_write_b16 v6, v3 offset:{L_Z}")
    a("s_branch L_zdone")
    a("L_gather_h:")
    a(f"s_sub_u32 s76, s68, {NATT}")
    a("s_mul_i32 s76, s76, 12288")
    a("s_lshl_b32 s78, s73, 10")
    a("s_add_u32 s78, s78, s76")
    a(f"s_add_u32 s78, s78, {WS_GP}")
    a("s_add_u32 s79, s78, 4096")
    a("s_add_u32 s80, s78, 8192")
    GB = 48
    def h_issue(k):
        for i in range(6):
            a(f"buffer_load_dwordx4 v[{GB+4*i}:{GB+4*i+3}], v{VOV}, s[{SWS}:{SWS+3}], s{78 + i//2} offen offset:{2048*(i%2)} sc1")
    poll("L_pollh", 1, 6, h_issue, lambda k: tagfold([GB + 4*i + kk for i in range(6) for kk in (1, 3)], 9, 10), lambda k: None, sleep=1)
    for m in range(2):
        for k in (0, 2):
            r = GB + 12 * m + k
            a(f"v_add_f32 v{r}, v{r}, v{r+4}")
            a(f"v_add_f32 v{r}, v{r}, v{r+8}")
            bf16r(a, r)
    k0 = math.sqrt(2.0 / math.pi)
    a(f"v_mov_b32 v11, {f32(0.044715)}")
    for g in (GB, GB + 2):
        a(f"v_mul_f32 v10, v{g}, v{g}")
        a(f"v_mul_f32 v10, v10, v{g}")
        a(f"v_fma_f32 v10, v10, v11, v{g}")
        a(f"v_mul_f32 v10, {f32(-2.0*k0*LOG2E)}, v10")
        a("v_exp_f32 v10, v10")
        a("s_nop 0")
        a("v_add_f32 v10, 1.0, v10")
        a("v_rcp_f32 v10, v10")
        a("s_nop 0")
        a(f"v_mul_f32 v{g}, v{g}, v10")
        bf16r(a, g)
        a(f"v_mul_f32 v{g}, v{g}, v{g+12}")
        a(f"v_cvt_pk_bf16_f32 v{g}, v{g}, v{g}")
    a("s_lshl_b32 s79, s73, 7")
    a("v_lshl_add_u32 v6, v0, 1, s79")
    a(f"ds_write_b16 v6, v{GB} offset:{L_Z}")
    a(f"ds_write_b16 v6, v{GB+2} offset:{L_Z+256}")
    a("L_zdone:")
    a("s_waitcnt lgkmcnt(0)")
    a("s_barrier")
    a("s_branch L_finish")
    a("L_notcomb:")
    a(f"s_cmp_lt_u32 s12, {NRED}")
    a("s_cbranch_scc0 L_finish")
    a("s_cmp_ge_u32 s3, 6")
    a("s_cbranch_scc0 L_finish")
    a("s_lshl_b32 s73, s12, 1")
    a("s_add_u32 s73, s73, s3")
    a("s_sub_u32 s73, s73, 6")
    a("v_lshrrev_b32 v6, 2, v0")
    a("v_mul_u32_u24 v6, 9216, v6")
    a("v_and_b32 v7, 3, v0")
    a("s_lshl_b32 s72, s73, 2")
    a("v_add_u32 v7, s72, v7")
    a("v_lshl_add_u32 v6, v7, 4, v6")
    a("v_lshlrev_b32 v7, 1, v7")
    a(f"buffer_load_ushort v2, v7, s[{SX}:{SX+3}], 0 offen")
    a(f"buffer_load_ushort v3, v7, s[{SX}:{SX+3}], 0 offen offset:1152")
    a("v_cmp_gt_u32 vcc, 16, v0")
    a(f"v_mov_b32 v8, {OOB}")
    a("s_nop 0")
    a("v_cndmask_b32 v8, v8, v6, vcc")
    for i in range(7):
        a(f"s_mov_b32 s{20+i}, {WS_YP + 9216*16*i}")
    FB = 16
    def f_issue(k):
        for i in range(3):
            a(f"buffer_load_dwordx4 v[{FB+4*i}:{FB+4*i+3}], v{6 if i < 2 else 8}, s[{SWS}:{SWS+3}], s{24+i} offen sc1")
    def f_check(k):
        a(f"v_mov_b32 v9, s{STAG}")
        a(f"v_cndmask_b32 v{FB+9}, v9, v{FB+9}, vcc")
        a(f"v_cndmask_b32 v{FB+11}, v9, v{FB+11}, vcc")
        tagfold([FB + 4*i + kk for i in range(3) for kk in (1, 3)], 9, 10)
    poll("L_pollf", 1, 3, f_issue, f_check, lambda k: None, sleep=2)
    for i in range(1, 3):
        a(f"v_add_f32 v{FB}, v{FB}, v{FB+4*i}")
        a(f"v_add_f32 v{FB+2}, v{FB+2}, v{FB+4*i+2}")
    def red16(r0, r1):
        a("s_nop 1")
        a(f"v_permlane32_swap_b32 v{r0}, v{r1}")
        a("s_nop 1")
        a(f"v_add_f32 v{r0}, v{r0}, v{r1}")
        for m in ("row_ror:4", "row_ror:8"):
            a("s_nop 1")
            a(f"v_add_f32_dpp v{r0}, v{r0}, v{r0} {m} row_mask:0xf bank_mask:0xf")
        xchg(a, r0, r1, 16)
    red16(FB, FB + 2)
    bf16r(a, FB)
    a("v_cmp_gt_u32 vcc, 32, v0")
    a("v_add_u32 v4, 1152, v7")
    a("s_nop 0")
    a("v_cndmask_b32 v2, v3, v2, vcc")
    a("v_cndmask_b32 v7, v4, v7, vcc")
    a("v_lshlrev_b32 v2, 16, v2")
    stamp(8)
    YS = lambda k: 32 + 16 * k
    def y_issue(k):
        for i in range(4):
            a(f"buffer_load_dwordx4 v[{YS(k)+4*i}:{YS(k)+4*i+3}], v6, s[{SWS}:{SWS+3}], s{20+i} offen sc1")
    def y_post(k):
        B = YS(k)
        a(f"v_add_f32 v12, v{B}, v{B+4}")
        a(f"v_add_f32 v13, v{B+2}, v{B+6}")
        a(f"v_add_f32 v14, v{B+8}, v{B+12}")
        a(f"v_add_f32 v15, v{B+10}, v{B+14}")
    poll("L_polly", nset2, 4, y_issue, lambda k: tagfold([YS(k) + 4*i + kk for i in range(4) for kk in (1, 3)], 9, 10), y_post, sleep=psleep)
    stamp(9)
    a("v_add_f32 v12, v12, v14")
    a("v_add_f32 v13, v13, v15")
    red16(12, 13)
    bf16r(a, 12)
    a("v_add_f32 v2, v2, v12")
    bf16r(a, 2)
    a(f"v_add_f32 v2, v2, v{FB}")
    a("v_cvt_pk_bf16_f32 v2, v2, v2")
    a("s_mov_b32 exec_lo, 0xf")
    a("s_mov_b32 exec_hi, 0xf")
    a(f"buffer_store_short v2, v7, s[{SOUT}:{SOUT+3}], 0 offen")
    a("s_cmp_eq_u32 s73, 0")
    a("s_cbranch_scc0 L_noepoch")
    a(f"s_sub_u32 s72, s{STAG}, {(TAGC - 1):#x}")
    a("v_mov_b32 v4, s72")
    a(f"v_mov_b32 v5, {WS_EPOCH}")
    a("s_mov_b64 exec, 1")
    a(f"buffer_store_dword v4, v5, s[{SWS}:{SWS+3}], 0 offen sc1")
    a("L_noepoch:")
    a("s_mov_b64 exec, -1")
    stamp(10)
    a("L_finish:")
    if ts:
        stamp(11)
        a("s_lshl_b32 s72, s2, 3")
        a("s_add_u32 s72, s72, s3")
        a("s_lshl_b32 s72, s72, 8")
        a(f"s_add_u32 s72, s72, {WS_TS}")
        a("v_lshlrev_b32 v1, 2, v0")
        a(f"buffer_store_dword v{VTS}, v1, s[{SWS}:{SWS+3}], s72 offen")
    a("L_end:")
    a("s_endpgm")
    a(".p2align 6")
    a(".type role_tab,@object")
    a("role_tab:")
    for d0, d1 in role_table(pool, ea, ec, eg, par):
        a(f".long {d0:#x}, {d1:#x}")
    a(".size role_tab, 2048")
    out = HEADER
    out += f"; @launch grid=(256,1,1) block=(512,1,1) lds={LDS_SIZE}\n"
    out += '.amdgcn_target "amdgcn-amd-amdhsa--gfx950"\n.text\n'
    out += a.text()
    k = Asm()
    k('.section .rodata,"a"')
    k(".p2align 6")
    k.kd(NAME, NV + 64, NV)
    out += k.text()
    return out

if __name__ == "__main__":
    cfg = json.loads(sys.argv[2]) if len(sys.argv) > 2 else {}
    open(sys.argv[1], "w").write(gen(**cfg))
```

```python
import sys, math, json
from asmlib import *
from gen_v3 import rowsum16, xchg, bf16r, perm_tile, HEADER, NAME, LOG2E, SCALE
import gen_v3
SX, SK, SV, SWQ, SWO, SWG, SWU, SWD, SOUT, SWS = 28, 32, 36, 40, 44, 48, 52, 56, 60, 64
WS_EPOCH = 0
WS_CNT  = 0x4000
WS_QP   = 0x10000
WS_GP   = 0x50000
WS_PART = 0xC0000
PART_STRIDE = 2176
WS_YP   = 0x150000
WS_TS   = 0x300000
WS_SIZE = 0x400000
TAGC = 0x9E3779B9
OOB = 0x40000000
L_RED2 = 0
L_QL  = 6144
L_CNT = 6656
L_Z   = 6720
L_RED = 7424
L_XNB = L_RED + 4096
L_O   = 7424
L_ML  = L_O + 8192
L_BLK = 16384
LDS_SIZE = L_BLK + 147456
assert gen_v3.L_XNB == L_XNB
STAG = 90
SPIN_MAX = 1 << 20
NATT, NCOMB, NRED = 64, 100, 72

def role_table(pool, ea, ec, eg, par):
    tab = []
    for s in range(32):
        roles = []
        for p in range(8):
            comb = 255
            if p < 2: comb = 2 * s + p
            elif p == 2: comb = 64 + s
            elif p == 3 and s < 4: comb = 96 + s
            gu = 255
            if s >= 4:
                if p != 2: gu = 20 + 7 * (s - 4) + (p if p < 2 else p - 1)
            elif p == 1 or p >= 4: gu = 5 * s + (0 if p == 1 else p - 3)
            red = 255
            if p in (4, 5) or (p == 6 and s < 8): red = (p - 4) * 32 + s
            split = (p - s) & 7
            ex = (ea if comb < 64 else (ec if comb < 100 else 0)) + (eg if gu != 255 else 0) + (par if split % 2 == 0 else -par)
            roles.append([comb, gu, red, ex])
        tot = 1024 - pool + sum(r[3] for r in roles)
        cnt = [tot // 8 - r[3] for r in roles]
        i = 7
        while sum(cnt) < 1024 - pool:
            cnt[i] += 1; i -= 1
        base = [sum(cnt[:k]) for k in range(8)]
        for split in range(8):
            p = (split + s) & 7
            tab.append((base[p] | (cnt[p] << 16), roles[p][0] | (roles[p][1] << 8) | (roles[p][2] << 16)))
    gus = sorted((t[1] >> 8) & 255 for t in tab if ((t[1] >> 8) & 255) != 255)
    assert gus == list(range(216)), gus
    assert sorted(t[1] & 255 for t in tab if (t[1] & 255) != 255) == list(range(100))
    assert sorted((t[1] >> 16) & 255 for t in tab if ((t[1] >> 16) & 255) != 255) == list(range(72))
    return tab

def gen(ts=0, th=4, pool=24, ea=4, ec=8, eg=4, par=1, rott=32, nset1=2, nset2=3, lightq=1, psleep=0, nopool=0, dbgts=0):
    a = Asm()
    a.kernel_begin(NAME)
    VTS = 159
    def stamp(i):
        if not ts: return
        if ts == 2 and i not in (0, 2, 4, 6, 11): return
        a("s_memrealtime s[100:101]")
        a("s_waitcnt lgkmcnt(0)")
        a(f"v_writelane_b32 v{VTS}, s100, {i}")
    def tagfold(regs, acc, tmp):
        regs = list(regs)
        a(f"v_xor_b32 v{acc}, s{STAG}, v{regs[0]}")
        rest = regs[1:]
        while rest:
            if len(rest) >= 2:
                a(f"v_xor_b32 v{tmp}, s{STAG}, v{rest[0]}")
                a(f"v_xor_b32 v{tmp+1}, s{STAG}, v{rest[1]}")
                a(f"v_or3_b32 v{acc}, v{acc}, v{tmp}, v{tmp+1}")
                rest = rest[2:]
            else:
                a(f"v_xor_b32 v{tmp}, s{STAG}, v{rest[0]}")
                a(f"v_or_b32 v{acc}, v{acc}, v{tmp}")
                rest = []
        a(f"v_cmp_ne_u32 s[92:93], 0, v{acc}")
    def poll(name, nsets, nloads, issue, check, post, sleep=0):
        a(f"s_mov_b32 s91, {SPIN_MAX}")
        for k in range(nsets): issue(k)
        a(f"{name}:")
        for k in range(nsets):
            a(f"s_waitcnt vmcnt({(nsets-1)*nloads})")
            check(k)
            a("s_nop 3")
            a("s_cmp_eq_u64 s[92:93], 0")
            a(f"s_cbranch_scc1 {name}_ok{k}")
            a("s_sub_u32 s91, s91, 1")
            a(f"s_cbranch_scc1 {name}_ok{k}")
            if sleep: a(f"s_sleep {sleep}")
            issue(k)
        a(f"s_branch {name}")
        for k in range(nsets):
            a(f"{name}_ok{k}:")
            post(k)
            if k < nsets - 1: a(f"s_branch {name}_done")
        a(f"{name}_done:")
    def selmasks(vc, vt):
        for k, sp in ((2, 4), (4, 6), (8, 8)):
            a(f"v_and_b32 v{vt}, {k}, v{vc}")
            a(f"v_cmp_ne_u32 s[{sp}:{sp+1}], 0, v{vt}")
    def seltree(DA, dst, dstep):
        for k in range(4):
            for r in range(4):
                a(f"v_cndmask_b32 v{DA+8*k+r}, v{DA+8*k+r}, v{DA+8*k+4+r}, s[4:5]")
        for k in range(2):
            for r in range(4):
                a(f"v_cndmask_b32 v{DA+16*k+r}, v{DA+16*k+r}, v{DA+16*k+8+r}, s[6:7]")
        for r in range(4):
            a(f"v_cndmask_b32 v{dst+dstep*r}, v{DA+r}, v{DA+16+r}, s[8:9]")
    VOK, VOV = 1, 2
    VM, VL, VAL, VT0 = 3, 4, 5, 6
    VS, VP, VPT, VQ, VACC, VV = 16, 24, 28, 36, 52, 84
    VCA, VONE, VG, VC = 148, 149, 150, 151
    VWA, VWM, VRA, VSA = 152, 153, 154, 155
    NV = 160
    AK = 0
    a("s_cmp_ge_u32 s2, 256")
    a("s_cbranch_scc1 L_end")
    a("s_load_dwordx16 s[4:19], s[0:1], 0")
    a("s_load_dwordx8 s[20:27], s[0:1], 64")
    a("s_getpc_b64 s[72:73]")
    a("L_pc:")
    a("s_add_u32 s72, s72, role_tab-L_pc")
    a("s_addc_u32 s73, s73, 0")
    a("s_lshl_b32 s74, s2, 3")
    a("s_load_dwordx2 s[68:69], s[72:73], s74")
    a("v_lshrrev_b32 v1, 6, v0")
    a("v_and_b32 v0, 63, v0")
    a("v_readfirstlane_b32 s3, v1")
    if ts: a(f"v_mov_b32 v{VTS}, 0")
    stamp(0)
    a("s_lshr_b32 s73, s2, 2")
    a("s_and_b32 s74, s2, 3")
    a("s_mul_i32 s75, s74, 144")
    a("s_mul_i32 s72, s3, 18")
    a("s_add_u32 s75, s75, s72")
    a("v_lshrrev_b32 v152, 3, v0")
    a("v_add_u32 v153, s75, v152")
    a("v_and_b32 v6, 7, v0")
    a("v_lshlrev_b32 v6, 4, v6")
    a("v_lshl_add_u32 v154, v153, 13, v6")
    a("v_cmp_gt_u32 vcc, 2, v152")
    a(f"v_mov_b32 v155, {OOB}")
    a("s_lshl_b32 s76, s73, 7")
    a("v_cndmask_b32 v155, v155, v154, vcc")
    a("s_add_u32 s77, s76, 65536")
    a("s_add_u32 s78, s76, 131072")
    a("v_lshrrev_b32 v156, 5, v0")
    a("v_mul_u32_u24 v156, 1152, v156")
    a("v_and_b32 v7, 31, v0")
    a("v_lshl_add_u32 v156, v7, 2, v156")
    a(f"v_lshrrev_b32 v{VG}, 4, v0")
    a(f"v_and_b32 v{VC}, 15, v0")
    a("v_and_b32 v6, 3, v0")
    a("v_lshlrev_b32 v6, 2, v6")
    a("v_bfe_u32 v7, v0, 2, 2")
    a("v_add_u32 v6, v6, v7")
    a("v_lshlrev_b32 v6, 8, v6")
    a(f"v_lshl_add_u32 v{VOK}, v{VG}, 4, v6")
    a(f"v_lshlrev_b32 v{VOV}, 4, v0")
    a("s_lshr_b32 s84, s2, 3")
    a("s_lshl_b32 s88, s84, 23")
    a(f"s_mul_i32 s85, s84, {rott}")
    a("s_waitcnt lgkmcnt(0)")
    a(f"s_load_dword s{STAG}, s[26:27], {WS_EPOCH}")
    a.srd(SX, 4, 2304)
    a.srd(SWQ, 10, 576 * 4096 * 2)
    VX, VF, VLT = 116, 126, 8
    VW = 36
    a("s_cmp_eq_u32 s3, 0")
    a("s_cbranch_scc0 L_nox")
    for i in range(9):
        a(f"buffer_load_dword v{VX+i}, v156, s[{SX}:{SX+3}], 0 offen offset:{128*i}")
    a("L_nox:")
    a(f"buffer_load_dwordx4 v[{VW}:{VW+3}], v154, s[{SWQ}:{SWQ+3}], s76 offen nt")
    a(f"buffer_load_dwordx4 v[{VW+4}:{VW+7}], v154, s[{SWQ}:{SWQ+3}], s77 offen nt")
    a(f"buffer_load_dwordx4 v[{VW+8}:{VW+11}], v155, s[{SWQ}:{SWQ+3}], s78 offen nt")
    a.srd(SK, 6, 1 << 28)
    a("s_and_b32 s89, s68, 0xffff")
    a("s_lshr_b32 s80, s68, 16")
    def tile_off(buf):
        su, so = 98 + buf, 94 + 2 * buf
        a(f"s_add_u32 s72, s{su}, s85")
        a("s_and_b32 s72, s72, 1023")
        a("s_lshl_b32 s72, s72, 13")
        a("s_add_u32 s72, s72, s88")
        a(f"s_cmp_lt_u32 s{su}, 1024")
        a(f"s_cselect_b32 s{so}, s72, {OOB}")
        a(f"s_add_u32 s{so+1}, s{so}, 4096")
    def kloads(buf):
        for t in range(2):
            for s in range(4):
                r = AK + 32 * buf + 16 * t + 4 * s
                a(f"buffer_load_dwordx4 a[{r}:{r+3}], v{VOK}, s[{SK}:{SK+3}], s{94+2*buf+t} offen offset:{64*s} nt")
    def vloads(buf):
        for i in range(8):
            r = VV + 32 * buf + 4 * i
            a(f"buffer_load_dwordx4 v[{r}:{r+3}], v{VOV}, s[{SV}:{SV+3}], s{94+2*buf+i//4} offen offset:{1024*(i%4)} nt")
    a("s_add_u32 s98, s89, s3")
    a("s_sub_u32 s98, s98, 1")
    a("s_add_u32 s99, s98, 7")
    a("s_cmp_eq_u32 s3, 0")
    a("s_cbranch_scc1 L_nok0")
    tile_off(0)
    kloads(0)
    a("L_nok0:")
    a.srd(SV, 8, 1 << 28)
    a.srd(SWG, 16, 576 * 4608 * 2)
    a.srd(SWU, 18, 576 * 4608 * 2)
    a.srd(SWO, 12, 4096 * 576 * 2)
    a.srd(SWD, 20, 4608 * 576 * 2)
    a.srd(SOUT, 22, 2304)
    a.srd(SWS, 26, WS_SIZE)
    a("s_lshl_b32 s72, s84, 8")
    a(f"s_add_u32 s72, s72, {WS_CNT}")
    a("s_add_u32 s70, s26, s72")
    a("s_addc_u32 s71, s27, 0")
    a("s_and_b32 s68, s69, 255")
    a("s_bfe_u32 s12, s69, 0x80010")
    a("s_bfe_u32 s69, s69, 0x80008")
    a("s_mov_b32 s19, 0x10000")
    if nopool:
        lo = NATT if nopool == 1 else 0
        a(f"s_sub_u32 s72, s68, {lo}")
        a(f"s_cmp_lt_u32 s72, {NCOMB - lo}")
        a("s_cselect_b32 s19, 0, s19")
    a("s_mov_b32 s82, 0x05040100")
    a("s_mov_b32 s83, 0x07060302")
    a(f"s_mov_b32 s86, {f32(SCALE)}")
    a(f"s_mov_b32 s87, {f32(LOG2E)}")
    a(f"v_mov_b32 v{VCA}, {L_CNT}")
    a(f"v_mov_b32 v{VONE}, 1")
    def dma_block(throttle):
        l1, l2 = a.label("L_dma_wd"), a.label("L_nodma")
        a(f"s_cmp_lt_u32 s68, {NCOMB}")
        a(f"s_cbranch_scc0 {l2}")
        a(f"s_cmp_lt_u32 s68, {NATT}")
        a(f"s_cbranch_scc0 {l1}")
        for which in (0, 1):
            srd = SWO if which == 0 else SWD
            n = 9 if which == 0 else 18
            if which == 1:
                a(f"{l1}:")
                a(f"s_sub_u32 s91, s68, {NATT}")
                a("s_mul_i32 s91, s91, 147456")
            else:
                a("s_mul_i32 s91, s68, 73728")
            a(f"s_mul_i32 s72, s3, {1024*n}")
            a("s_add_u32 s91, s91, s72")
            for i in range(n):
                if i % 4 == 0:
                    if throttle is not None and i % 8 == 0: a(f"s_waitcnt vmcnt({throttle})")
                    a(f"s_add_u32 m0, s72, {L_BLK + 1024*i}")
                    a(f"s_add_u32 s78, s91, {1024*i}")
                a(f"buffer_load_dwordx4 v{VOV}, s[{srd}:{srd+3}], s78 offen offset:{1024*(i%4)} nt lds")
            if which == 0:
                a(f"s_branch {l2}")
        a(f"{l2}:")
    a("s_cmp_eq_u32 s3, 0")
    a("s_cbranch_scc0 L_A0")
    a("s_and_b32 s72, s2, 15")
    a("s_cmp_lt_u32 s72, 2")
    a("s_cbranch_scc0 L_noinit")
    a("s_lshl_b32 s72, s72, 4")
    a("s_lshr_b32 s91, s2, 4")
    a("s_add_u32 s72, s72, s91")
    a("s_lshl_b32 s72, s72, 8")
    a(f"s_add_u32 s72, s72, {WS_CNT}")
    a(f"v_mov_b32 v6, {1024-pool}")
    a("v_mov_b32 v7, 0")
    a("s_mov_b64 exec, 1")
    a(f"buffer_store_dword v6, v7, s[{SWS}:{SWS+3}], s72 offen sc1")
    a("s_mov_b64 exec, -1")
    a("L_noinit:")
    a("s_waitcnt vmcnt(3)")
    stamp(1)
    gen_v3.ln_compute(a, VX, VF, VLT)
    a("v_mov_b32 v6, 16")
    a(f"ds_write_b32 v{VCA}, v6")
    a("s_waitcnt vmcnt(0) lgkmcnt(0)")
    a("L_A0:")
    a("v_add_u32 v6, 8, v153")
    a("v_add_u32 v7, 16, v153")
    a("v_min_u32 v7, 575, v7")
    a("v_lshlrev_b32 v153, 1, v153")
    a("v_lshlrev_b32 v6, 1, v6")
    a("v_lshlrev_b32 v7, 1, v7")
    a("s_barrier")
    XR = 8
    for i, r in enumerate((153, 6, 7)):
        a(f"ds_read_u16 v{XR+2*i}, v{r} offset:{L_XNB}")
        a(f"ds_read_u16 v{XR+2*i+1}, v{r} offset:{L_XNB+1152}")
    a("s_waitcnt lgkmcnt(0)")
    a(f"s_add_u32 s{STAG}, s{STAG}, {TAGC:#x}")
    for i in range(6):
        a(f"v_lshlrev_b32 v{XR+i}, 16, v{XR+i}")
    a("s_waitcnt vmcnt(8)")
    QA = 16
    for i in range(3):
        for w in range(4):
            a(f"v_lshlrev_b32 v14, 16, v{VW+4*i+w}")
            a(f"v_and_b32 v15, 0xffff0000, v{VW+4*i+w}")
            op = "v_mul_f32" if i == 0 else "v_fmac_f32"
            a(f"{op} v{QA+2*w}, v14, v{XR+2*i}")
            a(f"{op} v{QA+2*w+1}, v15, v{XR+2*i}")
            a(f"{op} v{QA+8+2*w}, v14, v{XR+2*i+1}")
            a(f"{op} v{QA+8+2*w+1}, v15, v{XR+2*i+1}")
    a("s_nop 1")
    for k in range(8):
        a(f"v_permlane32_swap_b32 v{QA+k}, v{QA+8+k}")
    a("s_nop 1")
    for k in range(8):
        a(f"v_add_f32 v{QA+k}, v{QA+k}, v{QA+8+k}")
    a("s_nop 1")
    for k in range(4):
        a(f"v_permlane16_swap_b32 v{QA+k}, v{QA+4+k}")
    a("s_nop 1")
    for k in range(4):
        a(f"v_add_f32 v{QA+k}, v{QA+k}, v{QA+4+k}")
    a("s_nop 1")
    for k in range(4):
        a(f"v_add_f32_dpp v{QA+k}, v{QA+k}, v{QA+k} row_ror:8 row_mask:0xf bank_mask:0xf")
    a("v_lshrrev_b32 v6, 5, v0")
    a("v_lshlrev_b32 v6, 8, v6")
    a("v_and_b32 v7, 7, v0")
    a("v_lshl_add_u32 v6, v7, 5, v6")
    a("v_bfe_u32 v7, v0, 4, 1")
    a("v_lshl_add_u32 v6, v7, 4, v6")
    a("s_lshl_b32 s72, s3, 9")
    a("v_add_u32 v6, s72, v6")
    a(f"ds_write_b128 v6, v[{QA}:{QA+3}] offset:{L_RED}")
    a("s_waitcnt lgkmcnt(0)")
    a("s_barrier")
    stamp(2)
    a("s_cmp_eq_u32 s3, 0")
    a("s_cbranch_scc0 L_prefetch")
    a("v_lshlrev_b32 v6, 3, v0")
    for w in range(8):
        a(f"ds_read_b64 v[{16+2*w}:{17+2*w}], v6 offset:{L_RED + 512*w}")
    a("v_lshrrev_b32 v6, 5, v0")
    a("v_lshlrev_b32 v6, 15, v6")
    a("v_and_b32 v7, 31, v0")
    a("v_lshl_add_u32 v6, v7, 4, v6")
    a("s_lshl_b32 s72, s74, 16")
    a("s_lshl_b32 s91, s73, 9")
    a("s_add_u32 s72, s72, s91")
    a(f"s_add_u32 s72, s72, {WS_QP}")
    a(f"v_mov_b32 v9, s{STAG}")
    a(f"v_mov_b32 v11, s{STAG}")
    a("s_waitcnt lgkmcnt(0)")
    a("v_add_f32 v8, v16, v18")
    a("v_add_f32 v10, v17, v19")
    for w in range(2, 8):
        a(f"v_add_f32 v8, v8, v{16+2*w}")
        a(f"v_add_f32 v10, v10, v{17+2*w}")
    a(f"buffer_store_dwordx4 v[8:11], v6, s[{SWS}:{SWS+3}], s72 offen sc1")
    stamp(3)
    a("s_lshr_b32 s72, s84, 4")
    a("s_lshl_b32 s72, s72, 15")
    a("s_and_b32 s91, s84, 15")
    a("s_lshl_b32 s91, s91, 11")
    a("s_add_u32 s72, s72, s91")
    a(f"s_add_u32 s76, s72, {WS_QP}")
    for rb in range(1, 4):
        a(f"s_add_u32 s{76+rb}, s76, {65536*rb}")
    if lightq:
        a("v_and_b32 v6, 3, v0")
        a("v_lshlrev_b32 v6, 16, v6")
        a("v_bfe_u32 v7, v0, 2, 2")
        a("v_lshl_add_u32 v6, v7, 9, v6")
        poll("L_pollq0", 1, 1,
             lambda k: a(f"buffer_load_dwordx2 v[12:13], v6, s[{SWS}:{SWS+3}], s76 offen sc1"),
             lambda k: a(f"v_cmp_ne_u32 s[92:93], s{STAG}, v13"),
             lambda k: None, sleep=4)
    PB = 16
    def q_issue(k):
        for rb in range(4):
            for h in range(2):
                r = PB + 8 * rb + 4 * h
                a(f"buffer_load_dwordx4 v[{r}:{r+3}], v{VOV}, s[{SWS}:{SWS+3}], s{76+rb} offen offset:{1024*h} sc1")
    poll("L_pollq", 1, 8, q_issue, lambda k: tagfold([PB + 4*i + kk for i in range(8) for kk in (1, 3)], 9, 10), lambda k: None, sleep=4)
    for h in range(2):
        for k in (0, 2):
            r = PB + 4 * h + k
            a(f"v_add_f32 v{r}, v{r}, v{r+8}")
            a(f"v_add_f32 v{r+16}, v{r+16}, v{r+24}")
            a(f"v_add_f32 v{r}, v{r}, v{r+16}")
        a(f"v_cvt_pk_bf16_f32 v{8+h}, v{PB+4*h}, v{PB+4*h+2}")
    a("v_lshlrev_b32 v6, 2, v0")
    a(f"ds_write_b32 v6, v8 offset:{L_QL}")
    a(f"ds_write_b32 v6, v9 offset:{L_QL+256}")
    a("s_waitcnt lgkmcnt(0)")
    stamp(12)
    a("s_branch L_B")
    a("L_prefetch:")
    a("s_mul_i32 s74, s69, 171")
    a("s_lshr_b32 s74, s74, 9")
    a("s_mul_i32 s72, s74, 3")
    a("s_sub_u32 s75, s69, s72")
    a("s_cmp_lt_u32 s69, 216")
    a("s_cselect_b32 s79, 1, 0")
    a("s_cmp_lt_u32 s3, 7")
    a("s_cselect_b32 s79, s79, 0")
    a("s_cmp_eq_u32 s79, 0")
    a("s_cbranch_scc1 L_nogu1")
    a("s_mul_i32 s76, s75, 192")
    a("s_lshl_b32 s72, s3, 5")
    a("s_add_u32 s76, s76, s72")
    a("s_sub_u32 s76, s76, 32")
    a(f"v_lshl_add_u32 v6, v{VG}, 3, s76")
    a("v_mul_u32_u24 v7, 9216, v6")
    a(f"v_lshl_add_u32 v7, v{VC}, 4, v7")
    a("s_lshr_b32 s77, s74, 1")
    a("s_lshl_b32 s77, s77, 8")
    a("v_and_b32 v8, 1, v0")
    a("v_mul_u32_u24 v8, 1152, v8")
    a("v_lshl_add_u32 v8, v6, 1, v8")
    a(f"ds_read_b128 v[12:15], v8 offset:{L_XNB}")
    a(f"s_waitcnt vmcnt({th})")
    a("s_bitcmp1_b32 s74, 0")
    a("s_cbranch_scc1 L_gu_up")
    for which, srd in ((0, SWG), (1, SWU)):
        if which: a("L_gu_up:")
        for i in range(8):
            a(f"buffer_load_dwordx4 v[{VACC+4*i}:{VACC+4*i+3}], v7, s[{srd}:{srd+3}], s77 offen nt")
            if i < 7: a("s_add_u32 s77, s77, 9216")
        if not which: a("s_branch L_nogu1")
    a("L_nogu1:")
    a(f"s_waitcnt vmcnt({th})")
    vloads(0)
    a("s_cmp_eq_u32 s79, 0")
    a("s_cbranch_scc1 L_nogu2")
    selmasks(VC, 6)
    a("s_waitcnt vmcnt(8) lgkmcnt(0)")
    DA = 16
    for j in range(8):
        tb = 8 if (j & 1) else 48
        perm_tile(a, VACC, tb, j)
        a("s_nop 1")
        a(f"v_mfma_f32_16x16x32_bf16 {vr(DA+4*j,4)}, {vr(tb,4)}, v[12:15], 0")
    a("s_lshl_b32 s72, s3, 10")
    a("s_sub_u32 s72, s72, 1024")
    a(f"v_add_u32 v6, s72, v{VOV}")
    a("s_nop 7")
    seltree(DA, 8, 1)
    a(f"ds_write_b128 v6, v[8:11] offset:{L_RED2}")
    a("L_nogu2:")
    a(f"s_waitcnt vmcnt({th})")
    tile_off(1)
    kloads(1)
    a(f"s_waitcnt vmcnt({th})")
    vloads(1)
    dma_block(th)
    a("s_waitcnt lgkmcnt(0)")
    stamp(3)
    a("L_B:")
    a("s_barrier")
    stamp(4)
    a("v_and_b32 v6, 1, v0")
    a("v_lshlrev_b32 v6, 8, v6")
    a(f"v_lshl_add_u32 v6, v{VG}, 4, v6")
    for s in range(4):
        a(f"ds_read_b128 v[{VQ+4*s}:{VQ+4*s+3}], v6 offset:{L_QL + 64*s}")
    a("s_cmp_eq_u32 s3, 0")
    a("s_cbranch_scc0 L_w0_done")
    a("s_add_u32 s98, s89, 14")
    a("s_add_u32 s99, s89, 15")
    tile_off(0)
    kloads(0)
    vloads(0)
    tile_off(1)
    kloads(1)
    vloads(1)
    dma_block(None)
    a("L_w0_done:")
    a("s_cmp_eq_u32 s3, 7")
    a("s_cbranch_scc0 L_nogu3")
    a("s_cmp_lt_u32 s69, 216")
    a("s_cbranch_scc0 L_nogu3")
    for w in range(6):
        a(f"ds_read_b128 v[{VACC+4*w}:{VACC+4*w+3}], v{VOV} offset:{L_RED2 + 1024*w}")
    a(f"v_lshlrev_b32 v6, 9, v{VG}")
    a(f"v_lshl_add_u32 v6, v{VC}, 3, v6")
    a("s_lshl_b32 s72, s69, 11")
    a(f"s_add_u32 s72, s72, {WS_GP}")
    a("s_waitcnt lgkmcnt(0)")
    for w in range(1, 6):
        for r in range(4):
            a(f"v_add_f32 v{VACC+r}, v{VACC+r}, v{VACC+4*w+r}")
    for r in range(4):
        a(f"v_mov_b32 v{8+2*r}, v{VACC+r}")
        a(f"v_mov_b32 v{9+2*r}, s{STAG}")
    for r in range(4):
        a(f"buffer_store_dwordx2 v[{8+2*r}:{9+2*r}], v6, s[{SWS}:{SWS+3}], s72 offen offset:{128*r} sc1")
    a("L_nogu3:")
    a(f"v_lshl_add_u32 v{VWA}, v{VC}, 2, v{VG}")
    a(f"v_lshlrev_b32 v{VWA}, 7, v{VWA}")
    a("s_lshl_b32 s72, s3, 10")
    a(f"v_add_u32 v{VWA}, s72, v{VWA}")
    a("s_lshl_b32 s72, s3, 4")
    a(f"v_lshl_add_u32 v{VWM}, v{VC}, 3, s72")
    a("s_and_b32 s72, s3, 1")
    a("s_lshl_b32 s72, s72, 6")
    a("v_add_u32 v6, s72, v0")
    a("v_lshrrev_b32 v7, 5, v6")
    a("v_bfe_u32 v16, v6, 3, 2")
    a("v_and_b32 v17, 7, v6")
    a("v_lshlrev_b32 v7, 5, v7")
    a("v_lshl_add_u32 v7, v17, 2, v7")
    a("v_add_u32 v7, v7, v16")
    a("s_bfe_u32 s13, s3, 0x10001")
    a("s_lshl_b32 s72, s13, 9")
    a(f"v_lshl_add_u32 v{VRA}, v7, 2, s72")
    a("s_lshl_b32 s72, s13, 10")
    a(f"v_lshl_add_u32 v{VSA}, v6, 3, s72")
    a(f"s_mul_i32 s81, s2, {PART_STRIDE}")
    a(f"s_add_u32 s81, s81, {WS_PART}")
    for i in range(32):
        a(f"v_mov_b32 v{VACC+i}, 0")
    a(f"v_mov_b32 v{VM}, 0xf149f2ca")
    a(f"v_mov_b32 v{VL}, 0")
    a("s_waitcnt lgkmcnt(0)")
    a("L_loop:")
    for buf in range(2):
        a(f"s_cmp_ge_u32 s{98+buf}, 1024")
        a("s_cbranch_scc1 L_loop_done")
        lt = a.label("L_have")
        a("s_mov_b64 exec, 1")
        a(f"ds_add_rtn_u32 v15, v{VCA}, v{VONE}")
        a("s_mov_b64 exec, -1")
        a("s_waitcnt vmcnt(24)")
        for s in range(4):
            for t in range(2):
                r = AK + 32 * buf + 16 * t + 4 * s
                c = "0" if s == 0 else vr(VS + 4 * t, 4)
                a(f"v_mfma_f32_16x16x32_bf16 {vr(VS+4*t,4)}, a[{r}:{r+3}], {vr(VQ+4*s,4)}, {c}")
        a("s_waitcnt lgkmcnt(0)")
        a("v_readfirstlane_b32 s72, v15")
        a("s_nop 3")
        a(f"s_add_u32 s{98+buf}, s72, s89")
        a("s_cmp_lt_u32 s72, s80")
        a(f"s_cbranch_scc1 {lt}")
        a(f"s_mov_b32 s{98+buf}, 1024")
        if pool:
            a("s_cmp_ge_u32 s72, s19")
            a(f"s_cbranch_scc1 {lt}")
            a(f"s_mov_b32 s{98+buf}, 1")
            a(f"s_atomic_add s{98+buf}, s[70:71], 0 glc")
            a("s_waitcnt lgkmcnt(0)")
            a(f"s_cmp_lt_u32 s{98+buf}, 1024")
            a(f"s_cbranch_scc1 {lt}")
            a("v_mov_b32 v15, 0x10000")
            a("s_mov_b64 exec, 1")
            a(f"ds_add_u32 v{VCA}, v15")
            a("s_mov_b64 exec, -1")
        a(f"{lt}:")
        tile_off(buf)
        kloads(buf)
        T = VT0
        for x in range(4):
            a(f"v_cvt_pk_bf16_f32 v{T+x}, v{VS+2*x}, v{VS+2*x+1}")
        for x in range(4):
            a(f"v_lshlrev_b32 v{VS+2*x}, 16, v{T+x}")
            a(f"v_and_b32 v{VS+2*x+1}, 0xffff0000, v{T+x}")
        for x in range(8):
            a(f"v_mul_f32 v{VS+x}, s86, v{VS+x}")
        for x in range(4):
            a(f"v_cvt_pk_bf16_f32 v{T+x}, v{VS+2*x}, v{VS+2*x+1}")
        for x in range(4):
            a(f"v_lshlrev_b32 v{VS+2*x}, 16, v{T+x}")
            a(f"v_and_b32 v{VS+2*x+1}, 0xffff0000, v{T+x}")
        a(f"v_max3_f32 v{T}, v{VS}, v{VS+1}, v{VS+2}")
        a(f"v_max3_f32 v{T+1}, v{VS+3}, v{VS+4}, v{VS+5}")
        a(f"v_max3_f32 v{T}, v{T}, v{VS+6}, v{VS+7}")
        a(f"v_max3_f32 v{T}, v{T}, v{T+1}, v{VM}")
        xchg(a, T, T + 1, 16, "max")
        xchg(a, T, T + 1, 32, "max")
        a(f"v_sub_f32 v{VAL}, v{VM}, v{T}")
        a(f"v_mul_f32 v{VAL}, s87, v{VAL}")
        a(f"v_exp_f32 v{VAL}, v{VAL}")
        a(f"v_mov_b32 v{VM}, v{T}")
        a(f"v_mul_f32 v{T+1}, s87, v{T}")
        for x in range(8):
            a(f"v_fma_f32 v{VS+x}, v{VS+x}, s87, -v{T+1}")
        for x in range(8):
            a(f"v_exp_f32 v{VS+x}, v{VS+x}")
        a(f"v_cmp_neq_f32 vcc, 1.0, v{VAL}")
        a(f"v_mul_f32 v{VL}, v{VL}, v{VAL}")
        for x in range(4):
            a(f"v_cvt_pk_bf16_f32 v{VP+x}, v{VS+2*x}, v{VS+2*x+1}")
        a(f"v_add_f32 v{T}, v{VS}, v{VS+1}")
        a(f"v_add_f32 v{T+1}, v{VS+2}, v{VS+3}")
        a(f"v_add_f32 v{T+2}, v{VS+4}, v{VS+5}")
        a(f"v_add_f32 v{T+3}, v{VS+6}, v{VS+7}")
        a(f"v_add_f32 v{T}, v{T}, v{T+1}")
        a(f"v_add_f32 v{T+2}, v{T+2}, v{T+3}")
        a(f"v_add_f32 v{T}, v{T}, v{T+2}")
        a(f"v_add_f32 v{VL}, v{VL}, v{T}")
        lab = a.label("L_noscale")
        a(f"s_cbranch_vccz {lab}")
        for i in range(32):
            a(f"v_mul_f32 v{VACC+i}, v{VACC+i}, v{VAL}")
        a(f"{lab}:")
        a("s_waitcnt vmcnt(24)")
        for j in range(8):
            tb = VPT + 4 * (j & 1)
            perm_tile(a, VV + 32 * buf, tb, j)
            a("s_nop 1")
            a(f"v_mfma_f32_16x16x32_bf16 {vr(VACC+4*j,4)}, {vr(tb,4)}, {vr(VP,4)}, {vr(VACC+4*j,4)}")
        vloads(buf)
    a("s_branch L_loop")
    a("L_loop_done:")
    stamp(5)
    a("s_mov_b32 exec_lo, 0x00030003")
    a("s_mov_b32 exec_hi, 0x00030003")
    for j in range(8):
        a(f"ds_write_b128 v{VWA}, {vr(VACC+4*j,4)} offset:{L_O+16*j}")
    a("s_mov_b64 exec, -1")
    xchg(a, VL, VT0, 16)
    xchg(a, VL, VT0, 32)
    a(f"v_mov_b32 v10, v{VM}")
    a(f"v_mov_b32 v11, v{VL}")
    a("s_mov_b64 exec, 3")
    a(f"ds_write_b64 v{VWM}, v[10:11] offset:{L_ML}")
    a("s_mov_b64 exec, -1")
    a("s_lshl_b32 s72, s13, 3")
    a("v_mov_b32 v8, s72")
    a("s_lshl_b32 s72, s13, 4")
    a("v_mov_b32 v7, s72")
    a(f"v_mov_b32 v13, s{STAG}")
    a(f"v_mov_b32 v41, s{STAG}")
    a(f"v_mov_b32 v43, s{STAG}")
    a("s_waitcnt vmcnt(0) lgkmcnt(0)")
    a("s_barrier")
    stamp(6)
    a("s_cmp_lt_u32 s3, 4")
    a("s_cbranch_scc0 L_nopub")
    for w in range(8):
        a(f"ds_read_b64 v[{24+2*w}:{25+2*w}], v8 offset:{L_ML+16*w}")
    for w in range(8):
        a(f"ds_read_b32 v{16+w}, v{VRA} offset:{L_O+1024*w}")
    a("s_waitcnt lgkmcnt(8)")
    a("v_max3_f32 v40, v24, v26, v28")
    a("v_max3_f32 v9, v30, v32, v34")
    a("v_max3_f32 v40, v40, v36, v38")
    a("v_max_f32 v40, v40, v9")
    a("v_mul_f32 v9, s87, v40")
    for w in range(8):
        a(f"v_fma_f32 v{24+2*w}, v{24+2*w}, s87, -v9")
    for w in range(8):
        a(f"v_exp_f32 v{24+2*w}, v{24+2*w}")
    a("s_waitcnt lgkmcnt(0)")
    a("v_mul_f32 v12, v16, v24")
    a("v_mul_f32 v14, v17, v26")
    for w in range(2, 8, 2):
        a(f"v_fmac_f32 v12, v{16+w}, v{24+2*w}")
        a(f"v_fmac_f32 v14, v{17+w}, v{26+2*w}")
    a("v_add_f32 v12, v12, v14")
    a(f"buffer_store_dwordx2 v[12:13], v{VSA}, s[{SWS}:{SWS+3}], s81 offen sc1")
    a("v_mul_f32 v42, v25, v24")
    for w in range(1, 8):
        a(f"v_fmac_f32 v42, v{25+2*w}, v{24+2*w}")
    a("s_mov_b64 exec, 1")
    a(f"buffer_store_dwordx4 v[40:43], v7, s[{SWS}:{SWS+3}], s81 offen offset:2048 sc1")
    a("s_mov_b64 exec, -1")
    a("L_nopub:")
    stamp(7)
    a(f"s_cmp_lt_u32 s68, {NCOMB}")
    a("s_cbranch_scc0 L_notcomb")
    a("s_cmp_eq_u32 s3, 7")
    a("s_cbranch_scc1 L_finish")
    a("s_and_b32 s72, s3, 6")
    a("s_cmp_eq_u32 s72, 4")
    a("s_cbranch_scc1 L_gather")
    a("s_min_u32 s73, s3, 4")
    a(f"v_mul_u32_u24 v46, 9216, v{VG}")
    a("s_lshl_b32 s72, s73, 4")
    a(f"v_add_u32 v47, s72, v{VC}")
    a("v_min_u32 v47, 71, v47")
    a("v_lshl_add_u32 v46, v47, 4, v46")
    a(f"v_add_u32 v46, {L_BLK}, v46")
    TMP = 48
    def prep(ks):
        for i in range(8):
            a(f"ds_read_b128 v[{TMP+4*i}:{TMP+4*i+3}], v46 offset:{1152*i}")
        a("v_add_u32 v46, 36864, v46")
        a("s_waitcnt lgkmcnt(0)")
        for j in range(8):
            if ks < 2:
                perm_tile(a, TMP, VV + 32 * ks + 4 * j, j)
            else:
                perm_tile(a, TMP, 8, j)
                for x in range(4):
                    a(f"v_accvgpr_write_b32 a{32*(ks-2)+4*j+x}, v{8+x}")
    prep(0); prep(1)
    a(f"s_cmp_lt_u32 s68, {NATT}")
    a("s_cbranch_scc1 L_prep_done")
    prep(2); prep(3)
    a("L_prep_done:")
    selmasks(VC, 8)
    a("s_lshl_b32 s72, s73, 7")
    a(f"v_lshl_add_u32 v46, v{VG}, 5, s72")
    a("v_mov_b32 v8, 576")
    a("v_cmp_lt_u32 s[10:11], v46, v8")
    a("v_lshlrev_b32 v46, 4, v46")
    a(f"v_lshl_add_u32 v46, v{VC}, 3, v46")
    a("s_mul_i32 s72, s68, 9216")
    a(f"s_add_u32 s72, s72, {WS_YP}")
    a("v_and_b32 v47, 1, v0")
    a("v_lshlrev_b32 v47, 8, v47")
    a(f"v_lshl_add_u32 v47, v{VG}, 4, v47")
    for r in range(4):
        a(f"v_mov_b32 v{25+2*r}, s{STAG}")
    a("s_barrier")
    stamp(9)
    for ks in range(4):
        a(f"ds_read_b128 v[{8+4*ks}:{11+4*ks}], v47 offset:{L_Z + 64*ks}")
    DA = 48
    def mm(ks):
        a(f"s_waitcnt lgkmcnt({3-ks})")
        for j in range(8):
            A = f"a[{32*(ks-2)+4*j}:{32*(ks-2)+4*j+3}]" if ks >= 2 else vr(VV + 32*ks + 4*j, 4)
            c = "0" if ks == 0 else vr(DA + 4*j, 4)
            a(f"v_mfma_f32_16x16x32_bf16 {vr(DA+4*j,4)}, {A}, v[{8+4*ks}:{11+4*ks}], {c}")
    mm(0); mm(1)
    a(f"s_cmp_lt_u32 s68, {NATT}")
    a("s_cbranch_scc1 L_mm_done")
    mm(2); mm(3)
    a("L_mm_done:")
    a("s_nop 6")
    seltree(DA, 24, 2)
    a("s_mov_b64 exec, s[10:11]")
    for r in range(4):
        a(f"buffer_store_dwordx2 v[{24+2*r}:{25+2*r}], v46, s[{SWS}:{SWS+3}], s72 offen offset:{128*r} sc1")
    a("s_mov_b64 exec, -1")
    stamp(10)
    a("s_branch L_finish")
    a("L_gather:")
    a("s_sub_u32 s73, s3, 4")
    a(f"s_cmp_lt_u32 s68, {NATT}")
    a("s_cbranch_scc0 L_gather_h")
    a("s_lshr_b32 s76, s68, 2")
    a("s_lshl_b32 s78, s73, 4")
    a("s_add_u32 s78, s78, s76")
    a(f"s_mul_i32 s78, s78, {8*PART_STRIDE}")
    a(f"s_add_u32 s20, s78, {WS_PART}")
    for s in range(1, 8):
        a(f"s_add_u32 s{20+s}, s20, {PART_STRIDE*s}")
    a("s_and_b32 s79, s68, 3")
    a("s_lshl_b32 s79, s79, 9")
    a("v_lshl_add_u32 v7, v0, 3, s79")
    a("s_bfe_u32 s79, s68, 0x10001")
    a("s_lshl_b32 s79, s79, 4")
    a("s_add_u32 s79, s79, 2048")
    a("v_and_b32 v8, 7, v0")
    a(f"v_mul_u32_u24 v8, {PART_STRIDE}, v8")
    a("v_add_u32 v8, s79, v8")
    a("s_lshl_b32 s79, s73, 8")
    a("v_lshl_add_u32 v6, v0, 1, s79")
    GS = lambda k: 48 + 20 * k
    def g_issue(k):
        a(f"buffer_load_dwordx4 v[{GS(k)}:{GS(k)+3}], v8, s[{SWS}:{SWS+3}], s20 offen sc1")
        for s in range(8):
            a(f"buffer_load_dwordx2 v[{GS(k)+4+2*s}:{GS(k)+5+2*s}], v7, s[{SWS}:{SWS+3}], s{20+s} offen sc1")
    def g_check(k):
        tagfold([GS(k) + 1, GS(k) + 3] + [GS(k) + 5 + 2*s for s in range(8)], 9, 10)
    def g_post(k):
        B = GS(k)
        a(f"v_mov_b32 v2, v{B}")
        for m in ("quad_perm:[1,0,3,2]", "quad_perm:[2,3,0,1]", "row_half_mirror"):
            a("s_nop 1")
            a(f"v_max_f32_dpp v2, v2, v2 {m} row_mask:0xf bank_mask:0xf")
        a(f"v_sub_f32 v3, v{B}, v2")
        a("v_mul_f32 v3, s87, v3")
        a("v_exp_f32 v3, v3")
        a("s_nop 0")
        a(f"v_mul_f32 v4, v3, v{B+2}")
        for m in ("quad_perm:[1,0,3,2]", "quad_perm:[2,3,0,1]", "row_half_mirror"):
            a("s_nop 1")
            a(f"v_add_f32_dpp v4, v4, v4 {m} row_mask:0xf bank_mask:0xf")
        for s in range(8):
            a(f"v_readlane_b32 s{4+s}, v3, {s}")
        a("v_rcp_f32 v5, v4")
        a(f"v_mul_f32 v2, s4, v{B+4}")
        a(f"v_mul_f32 v9, s5, v{B+6}")
        for s in range(2, 8, 2):
            a(f"v_fmac_f32 v2, s{4+s}, v{B+4+2*s}")
            a(f"v_fmac_f32 v9, s{5+s}, v{B+6+2*s}")
    poll("L_pollp", nset1, 9, g_issue, g_check, g_post, sleep=psleep)
    stamp(8)
    a("v_add_f32 v3, v2, v9")
    a("v_mul_f32 v9, v3, v5")
    a("v_fma_f32 v3, -v9, v4, v3")
    a("v_fma_f32 v3, v3, v5, v9")
    a("v_cvt_pk_bf16_f32 v3, v3, v3")
    a(f"ds_write_b16 v6, v3 offset:{L_Z}")
    a("s_branch L_zdone")
    a("L_gather_h:")
    a(f"s_sub_u32 s76, s68, {NATT}")
    a("s_mul_i32 s76, s76, 12288")
    a("s_lshl_b32 s78, s73, 10")
    a("s_add_u32 s78, s78, s76")
    a(f"s_add_u32 s78, s78, {WS_GP}")
    a("s_add_u32 s79, s78, 4096")
    a("s_add_u32 s80, s78, 8192")
    GB = 48
    def h_issue(k):
        for i in range(6):
            a(f"buffer_load_dwordx4 v[{GB+4*i}:{GB+4*i+3}], v{VOV}, s[{SWS}:{SWS+3}], s{78 + i//2} offen offset:{2048*(i%2)} sc1")
    poll("L_pollh", 1, 6, h_issue, lambda k: tagfold([GB + 4*i + kk for i in range(6) for kk in (1, 3)], 9, 10), lambda k: None, sleep=1)
    for m in range(2):
        for k in (0, 2):
            r = GB + 12 * m + k
            a(f"v_add_f32 v{r}, v{r}, v{r+4}")
            a(f"v_add_f32 v{r}, v{r}, v{r+8}")
            bf16r(a, r)
    k0 = math.sqrt(2.0 / math.pi)
    a(f"v_mov_b32 v11, {f32(0.044715)}")
    for g in (GB, GB + 2):
        a(f"v_mul_f32 v10, v{g}, v{g}")
        a(f"v_mul_f32 v10, v10, v{g}")
        a(f"v_fma_f32 v10, v10, v11, v{g}")
        a(f"v_mul_f32 v10, {f32(-2.0*k0*LOG2E)}, v10")
        a("v_exp_f32 v10, v10")
        a("s_nop 0")
        a("v_add_f32 v10, 1.0, v10")
        a("v_rcp_f32 v10, v10")
        a("s_nop 0")
        a(f"v_mul_f32 v{g}, v{g}, v10")
        bf16r(a, g)
        a(f"v_mul_f32 v{g}, v{g}, v{g+12}")
        a(f"v_cvt_pk_bf16_f32 v{g}, v{g}, v{g}")
    a("s_lshl_b32 s79, s73, 7")
    a("v_lshl_add_u32 v6, v0, 1, s79")
    a(f"ds_write_b16 v6, v{GB} offset:{L_Z}")
    a(f"ds_write_b16 v6, v{GB+2} offset:{L_Z+256}")
    a("L_zdone:")
    a("s_waitcnt lgkmcnt(0)")
    a("s_barrier")
    a("s_branch L_finish")
    a("L_notcomb:")
    a(f"s_cmp_lt_u32 s12, {NRED}")
    a("s_cbranch_scc0 L_finish")
    a("s_cmp_ge_u32 s3, 6")
    a("s_cbranch_scc0 L_finish")
    a("s_lshl_b32 s73, s12, 1")
    a("s_add_u32 s73, s73, s3")
    a("s_sub_u32 s73, s73, 6")
    a("v_lshrrev_b32 v6, 2, v0")
    a("v_mul_u32_u24 v6, 9216, v6")
    a("v_and_b32 v7, 3, v0")
    a("s_lshl_b32 s72, s73, 2")
    a("v_add_u32 v7, s72, v7")
    a("v_lshl_add_u32 v6, v7, 4, v6")
    a("v_lshlrev_b32 v7, 1, v7")
    a(f"buffer_load_ushort v2, v7, s[{SX}:{SX+3}], 0 offen")
    a(f"buffer_load_ushort v3, v7, s[{SX}:{SX+3}], 0 offen offset:1152")
    a("v_cmp_gt_u32 vcc, 16, v0")
    a(f"v_mov_b32 v8, {OOB}")
    a("s_nop 0")
    a("v_cndmask_b32 v8, v8, v6, vcc")
    for i in range(7):
        a(f"s_mov_b32 s{20+i}, {WS_YP + 9216*16*i}")
    FB = 16
    def f_issue(k):
        for i in range(3):
            a(f"buffer_load_dwordx4 v[{FB+4*i}:{FB+4*i+3}], v{6 if i < 2 else 8}, s[{SWS}:{SWS+3}], s{24+i} offen sc1")
    def f_check(k):
        a(f"v_mov_b32 v9, s{STAG}")
        a(f"v_cndmask_b32 v{FB+9}, v9, v{FB+9}, vcc")
        a(f"v_cndmask_b32 v{FB+11}, v9, v{FB+11}, vcc")
        tagfold([FB + 4*i + kk for i in range(3) for kk in (1, 3)], 9, 10)
    poll("L_pollf", 1, 3, f_issue, f_check, lambda k: None, sleep=2)
    for i in range(1, 3):
        a(f"v_add_f32 v{FB}, v{FB}, v{FB+4*i}")
        a(f"v_add_f32 v{FB+2}, v{FB+2}, v{FB+4*i+2}")
    def red16(r0, r1):
        a("s_nop 1")
        a(f"v_permlane32_swap_b32 v{r0}, v{r1}")
        a("s_nop 1")
        a(f"v_add_f32 v{r0}, v{r0}, v{r1}")
        for m in ("row_ror:4", "row_ror:8"):
            a("s_nop 1")
            a(f"v_add_f32_dpp v{r0}, v{r0}, v{r0} {m} row_mask:0xf bank_mask:0xf")
        xchg(a, r0, r1, 16)
    red16(FB, FB + 2)
    bf16r(a, FB)
    a("v_cmp_gt_u32 vcc, 32, v0")
    a("v_add_u32 v4, 1152, v7")
    a("s_nop 0")
    a("v_cndmask_b32 v2, v3, v2, vcc")
    a("v_cndmask_b32 v7, v4, v7, vcc")
    a("v_lshlrev_b32 v2, 16, v2")
    stamp(8)
    YS = lambda k: 32 + 16 * k
    def y_issue(k):
        for i in range(4):
            a(f"buffer_load_dwordx4 v[{YS(k)+4*i}:{YS(k)+4*i+3}], v6, s[{SWS}:{SWS+3}], s{20+i} offen sc1")
    def y_post(k):
        B = YS(k)
        a(f"v_add_f32 v12, v{B}, v{B+4}")
        a(f"v_add_f32 v13, v{B+2}, v{B+6}")
        a(f"v_add_f32 v14, v{B+8}, v{B+12}")
        a(f"v_add_f32 v15, v{B+10}, v{B+14}")
    poll("L_polly", nset2, 4, y_issue, lambda k: tagfold([YS(k) + 4*i + kk for i in range(4) for kk in (1, 3)], 9, 10), y_post, sleep=psleep)
    stamp(9)
    a("v_add_f32 v12, v12, v14")
    a("v_add_f32 v13, v13, v15")
    red16(12, 13)
    bf16r(a, 12)
    a("v_add_f32 v2, v2, v12")
    bf16r(a, 2)
    a(f"v_add_f32 v2, v2, v{FB}")
    a("v_cvt_pk_bf16_f32 v2, v2, v2")
    a("s_mov_b32 exec_lo, 0xf")
    a("s_mov_b32 exec_hi, 0xf")
    a(f"buffer_store_short v2, v7, s[{SOUT}:{SOUT+3}], 0 offen")
    a("s_cmp_eq_u32 s73, 0")
    a("s_cbranch_scc0 L_noepoch")
    a(f"s_sub_u32 s72, s{STAG}, {(TAGC - 1):#x}")
    a("v_mov_b32 v4, s72")
    a(f"v_mov_b32 v5, {WS_EPOCH}")
    a("s_mov_b64 exec, 1")
    a(f"buffer_store_dword v4, v5, s[{SWS}:{SWS+3}], 0 offen sc1")
    a("L_noepoch:")
    a("s_mov_b64 exec, -1")
    stamp(10)
    a("L_finish:")
    if ts:
        stamp(11)
        a("s_lshl_b32 s72, s2, 3")
        a("s_add_u32 s72, s72, s3")
        a("s_lshl_b32 s72, s72, 8")
        a(f"s_add_u32 s72, s72, {WS_TS}")
        a("v_lshlrev_b32 v1, 2, v0")
        a(f"buffer_store_dword v{VTS}, v1, s[{SWS}:{SWS+3}], s72 offen")
        if dbgts:
            a("s_load_dwordx2 s[4:5], s[0:1], 80")
            a("s_waitcnt lgkmcnt(0)")
            a("s_mov_b32 s6, 256")
            a("s_mov_b32 s7, 0x20000")
            a(f"v_not_b32 v2, v{VTS}")
            a("s_mov_b64 exec, 0xffff")
            a(f"buffer_atomic_umax v{VTS}, v1, s[4:7], 0 offen")
            a("s_mov_b64 exec, 1")
            a(f"buffer_atomic_umax v2, v1, s[4:7], 0 offen offset:4")
    a("L_end:")
    a("s_endpgm")
    a(".p2align 6")
    a(".type role_tab,@object")
    a("role_tab:")
    for d0, d1 in role_table(pool, ea, ec, eg, par):
        a(f".long {d0:#x}, {d1:#x}")
    a(".size role_tab, 2048")
    out = HEADER
    out += f"; @launch grid=(256,1,1) block=(512,1,1) lds={LDS_SIZE}\n"
    out += '.amdgcn_target "amdgcn-amd-amdhsa--gfx950"\n.text\n'
    out += a.text()
    k = Asm()
    k('.section .rodata,"a"')
    k(".p2align 6")
    k.kd(NAME, NV + 64, NV)
    out += k.text()
    return out

if __name__ == "__main__":
    cfg = json.loads(sys.argv[2]) if len(sys.argv) > 2 else {}
    open(sys.argv[1], "w").write(gen(**cfg))
```

```python
import sys, math, json
from asmlib import *
from gen_v3 import rowsum16, xchg, bf16r, perm_tile, HEADER, NAME, LOG2E, SCALE
import gen_v3
SX, SK, SV, SWQ, SWO, SWG, SWU, SWD, SOUT, SWS = 28, 32, 36, 40, 44, 48, 52, 56, 60, 64
WS_EPOCH = 0
WS_CNT  = 0x4000
WS_QP   = 0x10000
WS_GP   = 0x50000
WS_PART = 0xC0000
PART_STRIDE = 2176
WS_YP   = 0x150000
WS_TS   = 0x300000
WS_SIZE = 0x400000
TAGC = 0x9E3779B9
OOB = 0x40000000
L_RED2 = 0
L_QL  = 6144
L_CNT = 6656
L_Z   = 6720
L_RED = 7424
L_XNB = L_RED + 4096
L_O   = 7424
L_ML  = L_O + 8192
L_BLK = 16384
LDS_SIZE = L_BLK + 147456
assert gen_v3.L_XNB == L_XNB
STAG = 90
SPIN_MAX = 1 << 20
NATT, NCOMB, NRED = 64, 100, 72

def role_table(pool, ea, ec, eg, par):
    tab = []
    for s in range(32):
        roles = []
        for p in range(8):
            comb = 255
            if p < 2: comb = 2 * s + p
            elif p == 2: comb = 64 + s
            elif p == 3 and s < 4: comb = 96 + s
            gu = 255
            if s >= 4:
                if p != 2: gu = 20 + 7 * (s - 4) + (p if p < 2 else p - 1)
            elif p == 1 or p >= 4: gu = 5 * s + (0 if p == 1 else p - 3)
            red = 255
            if p in (4, 5) or (p == 6 and s < 8): red = (p - 4) * 32 + s
            split = (p - s) & 7
            ex = (ea if comb < 64 else (ec if comb < 100 else 0)) + (eg if gu != 255 else 0) + (par if split % 2 == 0 else -par)
            roles.append([comb, gu, red, ex])
        tot = 1024 - pool + sum(r[3] for r in roles)
        cnt = [tot // 8 - r[3] for r in roles]
        i = 7
        while sum(cnt) < 1024 - pool:
            cnt[i] += 1; i -= 1
        base = [sum(cnt[:k]) for k in range(8)]
        for split in range(8):
            p = (split + s) & 7
            tab.append((base[p] | (cnt[p] << 16), roles[p][0] | (roles[p][1] << 8) | (roles[p][2] << 16)))
    gus = sorted((t[1] >> 8) & 255 for t in tab if ((t[1] >> 8) & 255) != 255)
    assert gus == list(range(216)), gus
    assert sorted(t[1] & 255 for t in tab if (t[1] & 255) != 255) == list(range(100))
    assert sorted((t[1] >> 16) & 255 for t in tab if ((t[1] >> 16) & 255) != 255) == list(range(72))
    return tab

def gen(ts=0, th=4, pool=24, ea=4, ec=8, eg=4, par=1, rott=32, nset1=2, nset2=3, lightq=1, psleep=0, nopool=0, dbgts=0):
    a = Asm()
    a.kernel_begin(NAME)
    VTS = 159
    def stamp(i):
        if not ts: return
        if ts == 2 and i not in (0, 2, 4, 6, 11): return
        a("s_memrealtime s[100:101]")
        a("s_waitcnt lgkmcnt(0)")
        a(f"v_writelane_b32 v{VTS}, s100, {i}")
    def tagfold(regs, acc, tmp):
        regs = list(regs)
        a(f"v_xor_b32 v{acc}, s{STAG}, v{regs[0]}")
        rest = regs[1:]
        while rest:
            if len(rest) >= 2:
                a(f"v_xor_b32 v{tmp}, s{STAG}, v{rest[0]}")
                a(f"v_xor_b32 v{tmp+1}, s{STAG}, v{rest[1]}")
                a(f"v_or3_b32 v{acc}, v{acc}, v{tmp}, v{tmp+1}")
                rest = rest[2:]
            else:
                a(f"v_xor_b32 v{tmp}, s{STAG}, v{rest[0]}")
                a(f"v_or_b32 v{acc}, v{acc}, v{tmp}")
                rest = []
        a(f"v_cmp_ne_u32 s[92:93], 0, v{acc}")
    def poll(name, nsets, nloads, issue, check, post, sleep=0):
        a(f"s_mov_b32 s91, {SPIN_MAX}")
        for k in range(nsets): issue(k)
        a(f"{name}:")
        for k in range(nsets):
            a(f"s_waitcnt vmcnt({(nsets-1)*nloads})")
            check(k)
            a("s_nop 3")
            a("s_cmp_eq_u64 s[92:93], 0")
            a(f"s_cbranch_scc1 {name}_ok{k}")
            a("s_sub_u32 s91, s91, 1")
            a(f"s_cbranch_scc1 {name}_ok{k}")
            if sleep: a(f"s_sleep {sleep}")
            issue(k)
        a(f"s_branch {name}")
        for k in range(nsets):
            a(f"{name}_ok{k}:")
            post(k)
            if k < nsets - 1: a(f"s_branch {name}_done")
        a(f"{name}_done:")
    def selmasks(vc, vt):
        for k, sp in ((2, 4), (4, 6), (8, 8)):
            a(f"v_and_b32 v{vt}, {k}, v{vc}")
            a(f"v_cmp_ne_u32 s[{sp}:{sp+1}], 0, v{vt}")
    def seltree(DA, dst, dstep):
        for k in range(4):
            for r in range(4):
                a(f"v_cndmask_b32 v{DA+8*k+r}, v{DA+8*k+r}, v{DA+8*k+4+r}, s[4:5]")
        for k in range(2):
            for r in range(4):
                a(f"v_cndmask_b32 v{DA+16*k+r}, v{DA+16*k+r}, v{DA+16*k+8+r}, s[6:7]")
        for r in range(4):
            a(f"v_cndmask_b32 v{dst+dstep*r}, v{DA+r}, v{DA+16+r}, s[8:9]")
    VOK, VOV = 1, 2
    VM, VL, VAL, VT0 = 3, 4, 5, 6
    VS, VP, VPT, VQ, VACC, VV = 16, 24, 28, 36, 52, 84
    VCA, VONE, VG, VC = 148, 149, 150, 151
    VWA, VWM, VRA, VSA = 152, 153, 154, 155
    NV = 160
    AK = 0
    a("s_cmp_ge_u32 s2, 256")
    a("s_cbranch_scc1 L_end")
    a("s_load_dwordx16 s[4:19], s[0:1], 0")
    a("s_load_dwordx8 s[20:27], s[0:1], 64")
    a("s_getpc_b64 s[72:73]")
    a("L_pc:")
    a("s_add_u32 s72, s72, role_tab-L_pc")
    a("s_addc_u32 s73, s73, 0")
    a("s_lshl_b32 s74, s2, 3")
    a("s_load_dwordx2 s[68:69], s[72:73], s74")
    a("v_lshrrev_b32 v1, 6, v0")
    a("v_and_b32 v0, 63, v0")
    a("v_readfirstlane_b32 s3, v1")
    if ts: a(f"v_mov_b32 v{VTS}, 0")
    stamp(0)
    a("s_lshr_b32 s73, s2, 2")
    a("s_and_b32 s74, s2, 3")
    a("s_mul_i32 s75, s74, 144")
    a("s_mul_i32 s72, s3, 18")
    a("s_add_u32 s75, s75, s72")
    a("v_lshrrev_b32 v152, 3, v0")
    a("v_add_u32 v153, s75, v152")
    a("v_and_b32 v6, 7, v0")
    a("v_lshlrev_b32 v6, 4, v6")
    a("v_lshl_add_u32 v154, v153, 13, v6")
    a("v_cmp_gt_u32 vcc, 2, v152")
    a(f"v_mov_b32 v155, {OOB}")
    a("s_lshl_b32 s76, s73, 7")
    a("v_cndmask_b32 v155, v155, v154, vcc")
    a("s_add_u32 s77, s76, 65536")
    a("s_add_u32 s78, s76, 131072")
    a("v_lshrrev_b32 v156, 5, v0")
    a("v_mul_u32_u24 v156, 1152, v156")
    a("v_and_b32 v7, 31, v0")
    a("v_lshl_add_u32 v156, v7, 2, v156")
    a(f"v_lshrrev_b32 v{VG}, 4, v0")
    a(f"v_and_b32 v{VC}, 15, v0")
    a("v_and_b32 v6, 3, v0")
    a("v_lshlrev_b32 v6, 2, v6")
    a("v_bfe_u32 v7, v0, 2, 2")
    a("v_add_u32 v6, v6, v7")
    a("v_lshlrev_b32 v6, 8, v6")
    a(f"v_lshl_add_u32 v{VOK}, v{VG}, 4, v6")
    a(f"v_lshlrev_b32 v{VOV}, 4, v0")
    a("s_lshr_b32 s84, s2, 3")
    a("s_lshl_b32 s88, s84, 23")
    a(f"s_mul_i32 s85, s84, {rott}")
    a("s_waitcnt lgkmcnt(0)")
    a(f"s_load_dword s{STAG}, s[26:27], {WS_EPOCH}")
    a.srd(SX, 4, 2304)
    a.srd(SWQ, 10, 576 * 4096 * 2)
    VX, VF, VLT = 116, 126, 8
    VW = 36
    a("s_cmp_eq_u32 s3, 0")
    a("s_cbranch_scc0 L_nox")
    for i in range(9):
        a(f"buffer_load_dword v{VX+i}, v156, s[{SX}:{SX+3}], 0 offen offset:{128*i}")
    a("L_nox:")
    a(f"buffer_load_dwordx4 v[{VW}:{VW+3}], v154, s[{SWQ}:{SWQ+3}], s76 offen nt")
    a(f"buffer_load_dwordx4 v[{VW+4}:{VW+7}], v154, s[{SWQ}:{SWQ+3}], s77 offen nt")
    a(f"buffer_load_dwordx4 v[{VW+8}:{VW+11}], v155, s[{SWQ}:{SWQ+3}], s78 offen nt")
    a.srd(SK, 6, 1 << 28)
    a("s_and_b32 s89, s68, 0xffff")
    a("s_lshr_b32 s80, s68, 16")
    def tile_off(buf):
        su, so = 98 + buf, 94 + 2 * buf
        a(f"s_add_u32 s72, s{su}, s85")
        a("s_and_b32 s72, s72, 1023")
        a("s_lshl_b32 s72, s72, 13")
        a("s_add_u32 s72, s72, s88")
        a(f"s_cmp_lt_u32 s{su}, 1024")
        a(f"s_cselect_b32 s{so}, s72, {OOB}")
        a(f"s_add_u32 s{so+1}, s{so}, 4096")
    def kloads(buf):
        for t in range(2):
            for s in range(4):
                r = AK + 32 * buf + 16 * t + 4 * s
                a(f"buffer_load_dwordx4 a[{r}:{r+3}], v{VOK}, s[{SK}:{SK+3}], s{94+2*buf+t} offen offset:{64*s} nt")
    def vloads(buf):
        for i in range(8):
            r = VV + 32 * buf + 4 * i
            a(f"buffer_load_dwordx4 v[{r}:{r+3}], v{VOV}, s[{SV}:{SV+3}], s{94+2*buf+i//4} offen offset:{1024*(i%4)} nt")
    a("s_add_u32 s98, s89, s3")
    a("s_sub_u32 s98, s98, 1")
    a("s_add_u32 s99, s98, 7")
    a("s_cmp_eq_u32 s3, 0")
    a("s_cbranch_scc1 L_nok0")
    tile_off(0)
    kloads(0)
    a("L_nok0:")
    a.srd(SV, 8, 1 << 28)
    a.srd(SWG, 16, 576 * 4608 * 2)
    a.srd(SWU, 18, 576 * 4608 * 2)
    a.srd(SWO, 12, 4096 * 576 * 2)
    a.srd(SWD, 20, 4608 * 576 * 2)
    a.srd(SOUT, 22, 2304)
    a.srd(SWS, 26, WS_SIZE)
    a("s_lshl_b32 s72, s84, 8")
    a(f"s_add_u32 s72, s72, {WS_CNT}")
    a("s_add_u32 s70, s26, s72")
    a("s_addc_u32 s71, s27, 0")
    a("s_and_b32 s68, s69, 255")
    a("s_bfe_u32 s12, s69, 0x80010")
    a("s_bfe_u32 s69, s69, 0x80008")
    a("s_mov_b32 s19, 0x10000")
    if nopool:
        lo = NATT if nopool == 1 else 0
        a(f"s_sub_u32 s72, s68, {lo}")
        a(f"s_cmp_lt_u32 s72, {NCOMB - lo}")
        a("s_cselect_b32 s19, 0, s19")
    a("s_mov_b32 s82, 0x05040100")
    a("s_mov_b32 s83, 0x07060302")
    a(f"s_mov_b32 s86, {f32(SCALE)}")
    a(f"s_mov_b32 s87, {f32(LOG2E)}")
    a(f"v_mov_b32 v{VCA}, {L_CNT}")
    a(f"v_mov_b32 v{VONE}, 1")
    def dma_block(throttle):
        l1, l2 = a.label("L_dma_wd"), a.label("L_nodma")
        a(f"s_cmp_lt_u32 s68, {NCOMB}")
        a(f"s_cbranch_scc0 {l2}")
        a(f"s_cmp_lt_u32 s68, {NATT}")
        a(f"s_cbranch_scc0 {l1}")
        for which in (0, 1):
            srd = SWO if which == 0 else SWD
            n = 9 if which == 0 else 18
            if which == 1:
                a(f"{l1}:")
                a(f"s_sub_u32 s91, s68, {NATT}")
                a("s_mul_i32 s91, s91, 147456")
            else:
                a("s_mul_i32 s91, s68, 73728")
            a(f"s_mul_i32 s72, s3, {1024*n}")
            a("s_add_u32 s91, s91, s72")
            for i in range(n):
                if i % 4 == 0:
                    if throttle is not None and i % 8 == 0: a(f"s_waitcnt vmcnt({throttle})")
                    a(f"s_add_u32 m0, s72, {L_BLK + 1024*i}")
                    a(f"s_add_u32 s78, s91, {1024*i}")
                a(f"buffer_load_dwordx4 v{VOV}, s[{srd}:{srd+3}], s78 offen offset:{1024*(i%4)} nt lds")
            if which == 0:
                a(f"s_branch {l2}")
        a(f"{l2}:")
    a("s_cmp_eq_u32 s3, 0")
    a("s_cbranch_scc0 L_A0")
    a("s_and_b32 s72, s2, 15")
    a("s_cmp_lt_u32 s72, 2")
    a("s_cbranch_scc0 L_noinit")
    a("s_lshl_b32 s72, s72, 4")
    a("s_lshr_b32 s91, s2, 4")
    a("s_add_u32 s72, s72, s91")
    a("s_lshl_b32 s72, s72, 8")
    a(f"s_add_u32 s72, s72, {WS_CNT}")
    a(f"v_mov_b32 v6, {1024-pool}")
    a("v_mov_b32 v7, 0")
    a("s_mov_b64 exec, 1")
    a(f"buffer_store_dword v6, v7, s[{SWS}:{SWS+3}], s72 offen sc1")
    a("s_mov_b64 exec, -1")
    a("L_noinit:")
    a("s_waitcnt vmcnt(3)")
    stamp(1)
    gen_v3.ln_compute(a, VX, VF, VLT)
    a("v_mov_b32 v6, 16")
    a(f"ds_write_b32 v{VCA}, v6")
    a("s_waitcnt vmcnt(0) lgkmcnt(0)")
    a("L_A0:")
    a("v_add_u32 v6, 8, v153")
    a("v_add_u32 v7, 16, v153")
    a("v_min_u32 v7, 575, v7")
    a("v_lshlrev_b32 v153, 1, v153")
    a("v_lshlrev_b32 v6, 1, v6")
    a("v_lshlrev_b32 v7, 1, v7")
    a("s_barrier")
    XR = 8
    for i, r in enumerate((153, 6, 7)):
        a(f"ds_read_u16 v{XR+2*i}, v{r} offset:{L_XNB}")
        a(f"ds_read_u16 v{XR+2*i+1}, v{r} offset:{L_XNB+1152}")
    a("s_waitcnt lgkmcnt(0)")
    a(f"s_add_u32 s{STAG}, s{STAG}, {TAGC:#x}")
    for i in range(6):
        a(f"v_lshlrev_b32 v{XR+i}, 16, v{XR+i}")
    a("s_waitcnt vmcnt(8)")
    QA = 16
    for i in range(3):
        for w in range(4):
            a(f"v_lshlrev_b32 v14, 16, v{VW+4*i+w}")
            a(f"v_and_b32 v15, 0xffff0000, v{VW+4*i+w}")
            op = "v_mul_f32" if i == 0 else "v_fmac_f32"
            a(f"{op} v{QA+2*w}, v14, v{XR+2*i}")
            a(f"{op} v{QA+2*w+1}, v15, v{XR+2*i}")
            a(f"{op} v{QA+8+2*w}, v14, v{XR+2*i+1}")
            a(f"{op} v{QA+8+2*w+1}, v15, v{XR+2*i+1}")
    a("s_nop 1")
    for k in range(8):
        a(f"v_permlane32_swap_b32 v{QA+k}, v{QA+8+k}")
    a("s_nop 1")
    for k in range(8):
        a(f"v_add_f32 v{QA+k}, v{QA+k}, v{QA+8+k}")
    a("s_nop 1")
    for k in range(4):
        a(f"v_permlane16_swap_b32 v{QA+k}, v{QA+4+k}")
    a("s_nop 1")
    for k in range(4):
        a(f"v_add_f32 v{QA+k}, v{QA+k}, v{QA+4+k}")
    a("s_nop 1")
    for k in range(4):
        a(f"v_add_f32_dpp v{QA+k}, v{QA+k}, v{QA+k} row_ror:8 row_mask:0xf bank_mask:0xf")
    a("v_lshrrev_b32 v6, 5, v0")
    a("v_lshlrev_b32 v6, 8, v6")
    a("v_and_b32 v7, 7, v0")
    a("v_lshl_add_u32 v6, v7, 5, v6")
    a("v_bfe_u32 v7, v0, 4, 1")
    a("v_lshl_add_u32 v6, v7, 4, v6")
    a("s_lshl_b32 s72, s3, 9")
    a("v_add_u32 v6, s72, v6")
    a(f"ds_write_b128 v6, v[{QA}:{QA+3}] offset:{L_RED}")
    a("s_waitcnt lgkmcnt(0)")
    a("s_barrier")
    stamp(2)
    a("s_cmp_eq_u32 s3, 0")
    a("s_cbranch_scc0 L_prefetch")
    a("v_lshlrev_b32 v6, 3, v0")
    for w in range(8):
        a(f"ds_read_b64 v[{16+2*w}:{17+2*w}], v6 offset:{L_RED + 512*w}")
    a("v_lshrrev_b32 v6, 5, v0")
    a("v_lshlrev_b32 v6, 15, v6")
    a("v_and_b32 v7, 31, v0")
    a("v_lshl_add_u32 v6, v7, 4, v6")
    a("s_lshl_b32 s72, s74, 16")
    a("s_lshl_b32 s91, s73, 9")
    a("s_add_u32 s72, s72, s91")
    a(f"s_add_u32 s72, s72, {WS_QP}")
    a(f"v_mov_b32 v9, s{STAG}")
    a(f"v_mov_b32 v11, s{STAG}")
    a("s_waitcnt lgkmcnt(0)")
    a("v_add_f32 v8, v16, v18")
    a("v_add_f32 v10, v17, v19")
    for w in range(2, 8):
        a(f"v_add_f32 v8, v8, v{16+2*w}")
        a(f"v_add_f32 v10, v10, v{17+2*w}")
    a(f"buffer_store_dwordx4 v[8:11], v6, s[{SWS}:{SWS+3}], s72 offen sc1")
    stamp(3)
    a("s_lshr_b32 s72, s84, 4")
    a("s_lshl_b32 s72, s72, 15")
    a("s_and_b32 s91, s84, 15")
    a("s_lshl_b32 s91, s91, 11")
    a("s_add_u32 s72, s72, s91")
    a(f"s_add_u32 s76, s72, {WS_QP}")
    for rb in range(1, 4):
        a(f"s_add_u32 s{76+rb}, s76, {65536*rb}")
    if lightq:
        a("v_and_b32 v6, 3, v0")
        a("v_lshlrev_b32 v6, 16, v6")
        a("v_bfe_u32 v7, v0, 2, 2")
        a("v_lshl_add_u32 v6, v7, 9, v6")
        poll("L_pollq0", 1, 1,
             lambda k: a(f"buffer_load_dwordx2 v[12:13], v6, s[{SWS}:{SWS+3}], s76 offen sc1"),
             lambda k: a(f"v_cmp_ne_u32 s[92:93], s{STAG}, v13"),
             lambda k: None, sleep=4)
    PB = 16
    def q_issue(k):
        for rb in range(4):
            for h in range(2):
                r = PB + 8 * rb + 4 * h
                a(f"buffer_load_dwordx4 v[{r}:{r+3}], v{VOV}, s[{SWS}:{SWS+3}], s{76+rb} offen offset:{1024*h} sc1")
    poll("L_pollq", 1, 8, q_issue, lambda k: tagfold([PB + 4*i + kk for i in range(8) for kk in (1, 3)], 9, 10), lambda k: None, sleep=4)
    for h in range(2):
        for k in (0, 2):
            r = PB + 4 * h + k
            a(f"v_add_f32 v{r}, v{r}, v{r+8}")
            a(f"v_add_f32 v{r+16}, v{r+16}, v{r+24}")
            a(f"v_add_f32 v{r}, v{r}, v{r+16}")
        a(f"v_cvt_pk_bf16_f32 v{8+h}, v{PB+4*h}, v{PB+4*h+2}")
    a("v_lshlrev_b32 v6, 2, v0")
    a(f"ds_write_b32 v6, v8 offset:{L_QL}")
    a(f"ds_write_b32 v6, v9 offset:{L_QL+256}")
    a("s_waitcnt lgkmcnt(0)")
    stamp(12)
    a("s_branch L_B")
    a("L_prefetch:")
    a("s_mul_i32 s74, s69, 171")
    a("s_lshr_b32 s74, s74, 9")
    a("s_mul_i32 s72, s74, 3")
    a("s_sub_u32 s75, s69, s72")
    a("s_cmp_lt_u32 s69, 216")
    a("s_cselect_b32 s79, 1, 0")
    a("s_cmp_lt_u32 s3, 7")
    a("s_cselect_b32 s79, s79, 0")
    a("s_cmp_eq_u32 s79, 0")
    a("s_cbranch_scc1 L_nogu1")
    a("s_mul_i32 s76, s75, 192")
    a("s_lshl_b32 s72, s3, 5")
    a("s_add_u32 s76, s76, s72")
    a("s_sub_u32 s76, s76, 32")
    a(f"v_lshl_add_u32 v6, v{VG}, 3, s76")
    a("v_mul_u32_u24 v7, 9216, v6")
    a(f"v_lshl_add_u32 v7, v{VC}, 4, v7")
    a("s_lshr_b32 s77, s74, 1")
    a("s_lshl_b32 s77, s77, 8")
    a("v_and_b32 v8, 1, v0")
    a("v_mul_u32_u24 v8, 1152, v8")
    a("v_lshl_add_u32 v8, v6, 1, v8")
    a(f"ds_read_b128 v[12:15], v8 offset:{L_XNB}")
    a(f"s_waitcnt vmcnt({th})")
    a("s_bitcmp1_b32 s74, 0")
    a("s_cbranch_scc1 L_gu_up")
    for which, srd in ((0, SWG), (1, SWU)):
        if which: a("L_gu_up:")
        for i in range(8):
            a(f"buffer_load_dwordx4 v[{VACC+4*i}:{VACC+4*i+3}], v7, s[{srd}:{srd+3}], s77 offen nt")
            if i < 7: a("s_add_u32 s77, s77, 9216")
        if not which: a("s_branch L_nogu1")
    a("L_nogu1:")
    a(f"s_waitcnt vmcnt({th})")
    vloads(0)
    a("s_cmp_eq_u32 s79, 0")
    a("s_cbranch_scc1 L_nogu2")
    selmasks(VC, 6)
    a("s_waitcnt vmcnt(8) lgkmcnt(0)")
    DA = 16
    for j in range(8):
        tb = 8 if (j & 1) else 48
        perm_tile(a, VACC, tb, j)
        a("s_nop 1")
        a(f"v_mfma_f32_16x16x32_bf16 {vr(DA+4*j,4)}, {vr(tb,4)}, v[12:15], 0")
    a("s_lshl_b32 s72, s3, 10")
    a("s_sub_u32 s72, s72, 1024")
    a(f"v_add_u32 v6, s72, v{VOV}")
    a("s_nop 7")
    seltree(DA, 8, 1)
    a(f"ds_write_b128 v6, v[8:11] offset:{L_RED2}")
    a("L_nogu2:")
    a(f"s_waitcnt vmcnt({th})")
    tile_off(1)
    kloads(1)
    a(f"s_waitcnt vmcnt({th})")
    vloads(1)
    dma_block(th)
    a("s_waitcnt lgkmcnt(0)")
    stamp(3)
    a("L_B:")
    a("s_barrier")
    stamp(4)
    a("v_and_b32 v6, 1, v0")
    a("v_lshlrev_b32 v6, 8, v6")
    a(f"v_lshl_add_u32 v6, v{VG}, 4, v6")
    for s in range(4):
        a(f"ds_read_b128 v[{VQ+4*s}:{VQ+4*s+3}], v6 offset:{L_QL + 64*s}")
    a("s_cmp_eq_u32 s3, 0")
    a("s_cbranch_scc0 L_w0_done")
    a("s_add_u32 s98, s89, 14")
    a("s_add_u32 s99, s89, 15")
    tile_off(0)
    kloads(0)
    vloads(0)
    tile_off(1)
    kloads(1)
    vloads(1)
    dma_block(None)
    a("L_w0_done:")
    a("s_cmp_eq_u32 s3, 7")
    a("s_cbranch_scc0 L_nogu3")
    a("s_cmp_lt_u32 s69, 216")
    a("s_cbranch_scc0 L_nogu3")
    for w in range(6):
        a(f"ds_read_b128 v[{VACC+4*w}:{VACC+4*w+3}], v{VOV} offset:{L_RED2 + 1024*w}")
    a(f"v_lshlrev_b32 v6, 9, v{VG}")
    a(f"v_lshl_add_u32 v6, v{VC}, 3, v6")
    a("s_lshl_b32 s72, s69, 11")
    a(f"s_add_u32 s72, s72, {WS_GP}")
    a("s_waitcnt lgkmcnt(0)")
    for w in range(1, 6):
        for r in range(4):
            a(f"v_add_f32 v{VACC+r}, v{VACC+r}, v{VACC+4*w+r}")
    for r in range(4):
        a(f"v_mov_b32 v{8+2*r}, v{VACC+r}")
        a(f"v_mov_b32 v{9+2*r}, s{STAG}")
    for r in range(4):
        a(f"buffer_store_dwordx2 v[{8+2*r}:{9+2*r}], v6, s[{SWS}:{SWS+3}], s72 offen offset:{128*r} sc1")
    a("L_nogu3:")
    a(f"v_lshl_add_u32 v{VWA}, v{VC}, 2, v{VG}")
    a(f"v_lshlrev_b32 v{VWA}, 7, v{VWA}")
    a("s_lshl_b32 s72, s3, 10")
    a(f"v_add_u32 v{VWA}, s72, v{VWA}")
    a("s_lshl_b32 s72, s3, 4")
    a(f"v_lshl_add_u32 v{VWM}, v{VC}, 3, s72")
    a("s_and_b32 s72, s3, 1")
    a("s_lshl_b32 s72, s72, 6")
    a("v_add_u32 v6, s72, v0")
    a("v_lshrrev_b32 v7, 5, v6")
    a("v_bfe_u32 v16, v6, 3, 2")
    a("v_and_b32 v17, 7, v6")
    a("v_lshlrev_b32 v7, 5, v7")
    a("v_lshl_add_u32 v7, v17, 2, v7")
    a("v_add_u32 v7, v7, v16")
    a("s_bfe_u32 s13, s3, 0x10001")
    a("s_lshl_b32 s72, s13, 9")
    a(f"v_lshl_add_u32 v{VRA}, v7, 2, s72")
    a("s_lshl_b32 s72, s13, 10")
    a(f"v_lshl_add_u32 v{VSA}, v6, 3, s72")
    a(f"s_mul_i32 s81, s2, {PART_STRIDE}")
    a(f"s_add_u32 s81, s81, {WS_PART}")
    for i in range(32):
        a(f"v_mov_b32 v{VACC+i}, 0")
    a(f"v_mov_b32 v{VM}, 0xf149f2ca")
    a(f"v_mov_b32 v{VL}, 0")
    a("s_waitcnt lgkmcnt(0)")
    a("L_loop:")
    for buf in range(2):
        a(f"s_cmp_ge_u32 s{98+buf}, 1024")
        a("s_cbranch_scc1 L_loop_done")
        lt = a.label("L_have")
        a("s_mov_b64 exec, 1")
        a(f"ds_add_rtn_u32 v15, v{VCA}, v{VONE}")
        a("s_mov_b64 exec, -1")
        a("s_waitcnt vmcnt(24)")
        for s in range(4):
            for t in range(2):
                r = AK + 32 * buf + 16 * t + 4 * s
                c = "0" if s == 0 else vr(VS + 4 * t, 4)
                a(f"v_mfma_f32_16x16x32_bf16 {vr(VS+4*t,4)}, a[{r}:{r+3}], {vr(VQ+4*s,4)}, {c}")
        a("s_waitcnt lgkmcnt(0)")
        a("v_readfirstlane_b32 s72, v15")
        a("s_nop 3")
        a(f"s_add_u32 s{98+buf}, s72, s89")
        a("s_cmp_lt_u32 s72, s80")
        a(f"s_cbranch_scc1 {lt}")
        a(f"s_mov_b32 s{98+buf}, 1024")
        if pool:
            a("s_cmp_ge_u32 s72, s19")
            a(f"s_cbranch_scc1 {lt}")
            a(f"s_mov_b32 s{98+buf}, 1")
            a(f"s_atomic_add s{98+buf}, s[70:71], 0 glc")
            a("s_waitcnt lgkmcnt(0)")
            a(f"s_cmp_lt_u32 s{98+buf}, 1024")
            a(f"s_cbranch_scc1 {lt}")
            a("v_mov_b32 v15, 0x10000")
            a("s_mov_b64 exec, 1")
            a(f"ds_add_u32 v{VCA}, v15")
            a("s_mov_b64 exec, -1")
        a(f"{lt}:")
        tile_off(buf)
        kloads(buf)
        T = VT0
        for x in range(4):
            a(f"v_cvt_pk_bf16_f32 v{T+x}, v{VS+2*x}, v{VS+2*x+1}")
        for x in range(4):
            a(f"v_lshlrev_b32 v{VS+2*x}, 16, v{T+x}")
            a(f"v_and_b32 v{VS+2*x+1}, 0xffff0000, v{T+x}")
        for x in range(8):
            a(f"v_mul_f32 v{VS+x}, s86, v{VS+x}")
        for x in range(4):
            a(f"v_cvt_pk_bf16_f32 v{T+x}, v{VS+2*x}, v{VS+2*x+1}")
        for x in range(4):
            a(f"v_lshlrev_b32 v{VS+2*x}, 16, v{T+x}")
            a(f"v_and_b32 v{VS+2*x+1}, 0xffff0000, v{T+x}")
        a(f"v_max3_f32 v{T}, v{VS}, v{VS+1}, v{VS+2}")
        a(f"v_max3_f32 v{T+1}, v{VS+3}, v{VS+4}, v{VS+5}")
        a(f"v_max3_f32 v{T}, v{T}, v{VS+6}, v{VS+7}")
        a(f"v_max3_f32 v{T}, v{T}, v{T+1}, v{VM}")
        xchg(a, T, T + 1, 16, "max")
        xchg(a, T, T + 1, 32, "max")
        a(f"v_sub_f32 v{VAL}, v{VM}, v{T}")
        a(f"v_mul_f32 v{VAL}, s87, v{VAL}")
        a(f"v_exp_f32 v{VAL}, v{VAL}")
        a(f"v_mov_b32 v{VM}, v{T}")
        a(f"v_mul_f32 v{T+1}, s87, v{T}")
        for x in range(8):
            a(f"v_fma_f32 v{VS+x}, v{VS+x}, s87, -v{T+1}")
        for x in range(8):
            a(f"v_exp_f32 v{VS+x}, v{VS+x}")
        a(f"v_cmp_neq_f32 vcc, 1.0, v{VAL}")
        a(f"v_mul_f32 v{VL}, v{VL}, v{VAL}")
        for x in range(4):
            a(f"v_cvt_pk_bf16_f32 v{VP+x}, v{VS+2*x}, v{VS+2*x+1}")
        a(f"v_add_f32 v{T}, v{VS}, v{VS+1}")
        a(f"v_add_f32 v{T+1}, v{VS+2}, v{VS+3}")
        a(f"v_add_f32 v{T+2}, v{VS+4}, v{VS+5}")
        a(f"v_add_f32 v{T+3}, v{VS+6}, v{VS+7}")
        a(f"v_add_f32 v{T}, v{T}, v{T+1}")
        a(f"v_add_f32 v{T+2}, v{T+2}, v{T+3}")
        a(f"v_add_f32 v{T}, v{T}, v{T+2}")
        a(f"v_add_f32 v{VL}, v{VL}, v{T}")
        lab = a.label("L_noscale")
        a(f"s_cbranch_vccz {lab}")
        for i in range(32):
            a(f"v_mul_f32 v{VACC+i}, v{VACC+i}, v{VAL}")
        a(f"{lab}:")
        a("s_waitcnt vmcnt(24)")
        for j in range(8):
            tb = VPT + 4 * (j & 1)
            perm_tile(a, VV + 32 * buf, tb, j)
            a("s_nop 1")
            a(f"v_mfma_f32_16x16x32_bf16 {vr(VACC+4*j,4)}, {vr(tb,4)}, {vr(VP,4)}, {vr(VACC+4*j,4)}")
        vloads(buf)
    a("s_branch L_loop")
    a("L_loop_done:")
    stamp(5)
    a("s_mov_b32 exec_lo, 0x00030003")
    a("s_mov_b32 exec_hi, 0x00030003")
    for j in range(8):
        a(f"ds_write_b128 v{VWA}, {vr(VACC+4*j,4)} offset:{L_O+16*j}")
    a("s_mov_b64 exec, -1")
    xchg(a, VL, VT0, 16)
    xchg(a, VL, VT0, 32)
    a(f"v_mov_b32 v10, v{VM}")
    a(f"v_mov_b32 v11, v{VL}")
    a("s_mov_b64 exec, 3")
    a(f"ds_write_b64 v{VWM}, v[10:11] offset:{L_ML}")
    a("s_mov_b64 exec, -1")
    a("s_lshl_b32 s72, s13, 3")
    a("v_mov_b32 v8, s72")
    a("s_lshl_b32 s72, s13, 4")
    a("v_mov_b32 v7, s72")
    a(f"v_mov_b32 v13, s{STAG}")
    a(f"v_mov_b32 v41, s{STAG}")
    a(f"v_mov_b32 v43, s{STAG}")
    a("s_waitcnt vmcnt(0) lgkmcnt(0)")
    a("s_barrier")
    stamp(6)
    a("s_cmp_lt_u32 s3, 4")
    a("s_cbranch_scc0 L_nopub")
    for w in range(8):
        a(f"ds_read_b64 v[{24+2*w}:{25+2*w}], v8 offset:{L_ML+16*w}")
    for w in range(8):
        a(f"ds_read_b32 v{16+w}, v{VRA} offset:{L_O+1024*w}")
    a("s_waitcnt lgkmcnt(8)")
    a("v_max3_f32 v40, v24, v26, v28")
    a("v_max3_f32 v9, v30, v32, v34")
    a("v_max3_f32 v40, v40, v36, v38")
    a("v_max_f32 v40, v40, v9")
    a("v_mul_f32 v9, s87, v40")
    for w in range(8):
        a(f"v_fma_f32 v{24+2*w}, v{24+2*w}, s87, -v9")
    for w in range(8):
        a(f"v_exp_f32 v{24+2*w}, v{24+2*w}")
    a("s_waitcnt lgkmcnt(0)")
    a("v_mul_f32 v12, v16, v24")
    a("v_mul_f32 v14, v17, v26")
    for w in range(2, 8, 2):
        a(f"v_fmac_f32 v12, v{16+w}, v{24+2*w}")
        a(f"v_fmac_f32 v14, v{17+w}, v{26+2*w}")
    a("v_add_f32 v12, v12, v14")
    a(f"buffer_store_dwordx2 v[12:13], v{VSA}, s[{SWS}:{SWS+3}], s81 offen sc1")
    a("v_mul_f32 v42, v25, v24")
    for w in range(1, 8):
        a(f"v_fmac_f32 v42, v{25+2*w}, v{24+2*w}")
    a("s_mov_b64 exec, 1")
    a(f"buffer_store_dwordx4 v[40:43], v7, s[{SWS}:{SWS+3}], s81 offen offset:2048 sc1")
    a("s_mov_b64 exec, -1")
    a("L_nopub:")
    stamp(7)
    a(f"s_cmp_lt_u32 s68, {NCOMB}")
    a("s_cbranch_scc0 L_notcomb")
    a("s_cmp_eq_u32 s3, 7")
    a("s_cbranch_scc1 L_finish")
    a("s_and_b32 s72, s3, 6")
    a("s_cmp_eq_u32 s72, 4")
    a("s_cbranch_scc1 L_gather")
    a("s_min_u32 s73, s3, 4")
    a(f"v_mul_u32_u24 v46, 9216, v{VG}")
    a("s_lshl_b32 s72, s73, 4")
    a(f"v_add_u32 v47, s72, v{VC}")
    a("v_min_u32 v47, 71, v47")
    a("v_lshl_add_u32 v46, v47, 4, v46")
    a(f"v_add_u32 v46, {L_BLK}, v46")
    TMP = 48
    def prep(ks):
        for i in range(8):
            a(f"ds_read_b128 v[{TMP+4*i}:{TMP+4*i+3}], v46 offset:{1152*i}")
        a("v_add_u32 v46, 36864, v46")
        a("s_waitcnt lgkmcnt(0)")
        for j in range(8):
            if ks < 2:
                perm_tile(a, TMP, VV + 32 * ks + 4 * j, j)
            else:
                perm_tile(a, TMP, 8, j)
                for x in range(4):
                    a(f"v_accvgpr_write_b32 a{32*(ks-2)+4*j+x}, v{8+x}")
    prep(0); prep(1)
    a(f"s_cmp_lt_u32 s68, {NATT}")
    a("s_cbranch_scc1 L_prep_done")
    prep(2); prep(3)
    a("L_prep_done:")
    selmasks(VC, 8)
    a("s_lshl_b32 s72, s73, 7")
    a(f"v_lshl_add_u32 v46, v{VG}, 5, s72")
    a("v_mov_b32 v8, 576")
    a("v_cmp_lt_u32 s[10:11], v46, v8")
    a("v_lshlrev_b32 v46, 4, v46")
    a(f"v_lshl_add_u32 v46, v{VC}, 3, v46")
    a("s_mul_i32 s72, s68, 9216")
    a(f"s_add_u32 s72, s72, {WS_YP}")
    a("v_and_b32 v47, 1, v0")
    a("v_lshlrev_b32 v47, 8, v47")
    a(f"v_lshl_add_u32 v47, v{VG}, 4, v47")
    for r in range(4):
        a(f"v_mov_b32 v{25+2*r}, s{STAG}")
    a("s_barrier")
    stamp(9)
    for ks in range(4):
        a(f"ds_read_b128 v[{8+4*ks}:{11+4*ks}], v47 offset:{L_Z + 64*ks}")
    DA = 48
    def mm(ks):
        a(f"s_waitcnt lgkmcnt({3-ks})")
        for j in range(8):
            A = f"a[{32*(ks-2)+4*j}:{32*(ks-2)+4*j+3}]" if ks >= 2 else vr(VV + 32*ks + 4*j, 4)
            c = "0" if ks == 0 else vr(DA + 4*j, 4)
            a(f"v_mfma_f32_16x16x32_bf16 {vr(DA+4*j,4)}, {A}, v[{8+4*ks}:{11+4*ks}], {c}")
    mm(0); mm(1)
    a(f"s_cmp_lt_u32 s68, {NATT}")
    a("s_cbranch_scc1 L_mm_done")
    mm(2); mm(3)
    a("L_mm_done:")
    a("s_nop 6")
    seltree(DA, 24, 2)
    a("s_mov_b64 exec, s[10:11]")
    for r in range(4):
        a(f"buffer_store_dwordx2 v[{24+2*r}:{25+2*r}], v46, s[{SWS}:{SWS+3}], s72 offen offset:{128*r} sc1")
    a("s_mov_b64 exec, -1")
    stamp(10)
    a("s_branch L_finish")
    a("L_gather:")
    a("s_sub_u32 s73, s3, 4")
    a(f"s_cmp_lt_u32 s68, {NATT}")
    a("s_cbranch_scc0 L_gather_h")
    a("s_lshr_b32 s76, s68, 2")
    a("s_lshl_b32 s78, s73, 4")
    a("s_add_u32 s78, s78, s76")
    a(f"s_mul_i32 s78, s78, {8*PART_STRIDE}")
    a(f"s_add_u32 s20, s78, {WS_PART}")
    for s in range(1, 8):
        a(f"s_add_u32 s{20+s}, s20, {PART_STRIDE*s}")
    a("s_and_b32 s79, s68, 3")
    a("s_lshl_b32 s79, s79, 9")
    a("v_lshl_add_u32 v7, v0, 3, s79")
    a("s_bfe_u32 s79, s68, 0x10001")
    a("s_lshl_b32 s79, s79, 4")
    a("s_add_u32 s79, s79, 2048")
    a("v_and_b32 v8, 7, v0")
    a(f"v_mul_u32_u24 v8, {PART_STRIDE}, v8")
    a("v_add_u32 v8, s79, v8")
    a("s_lshl_b32 s79, s73, 8")
    a("v_lshl_add_u32 v6, v0, 1, s79")
    GS = lambda k: 48 + 20 * k
    def g_issue(k):
        a(f"buffer_load_dwordx4 v[{GS(k)}:{GS(k)+3}], v8, s[{SWS}:{SWS+3}], s20 offen sc1")
        for s in range(8):
            a(f"buffer_load_dwordx2 v[{GS(k)+4+2*s}:{GS(k)+5+2*s}], v7, s[{SWS}:{SWS+3}], s{20+s} offen sc1")
    def g_check(k):
        tagfold([GS(k) + 1, GS(k) + 3] + [GS(k) + 5 + 2*s for s in range(8)], 9, 10)
    def g_post(k):
        B = GS(k)
        a(f"v_mov_b32 v2, v{B}")
        for m in ("quad_perm:[1,0,3,2]", "quad_perm:[2,3,0,1]", "row_half_mirror"):
            a("s_nop 1")
            a(f"v_max_f32_dpp v2, v2, v2 {m} row_mask:0xf bank_mask:0xf")
        a(f"v_sub_f32 v3, v{B}, v2")
        a("v_mul_f32 v3, s87, v3")
        a("v_exp_f32 v3, v3")
        a("s_nop 0")
        a(f"v_mul_f32 v4, v3, v{B+2}")
        for m in ("quad_perm:[1,0,3,2]", "quad_perm:[2,3,0,1]", "row_half_mirror"):
            a("s_nop 1")
            a(f"v_add_f32_dpp v4, v4, v4 {m} row_mask:0xf bank_mask:0xf")
        for s in range(8):
            a(f"v_readlane_b32 s{4+s}, v3, {s}")
        a("v_rcp_f32 v5, v4")
        a(f"v_mul_f32 v2, s4, v{B+4}")
        a(f"v_mul_f32 v9, s5, v{B+6}")
        for s in range(2, 8, 2):
            a(f"v_fmac_f32 v2, s{4+s}, v{B+4+2*s}")
            a(f"v_fmac_f32 v9, s{5+s}, v{B+6+2*s}")
    poll("L_pollp", nset1, 9, g_issue, g_check, g_post, sleep=psleep)
    stamp(8)
    a("v_add_f32 v3, v2, v9")
    a("v_mul_f32 v9, v3, v5")
    a("v_fma_f32 v3, -v9, v4, v3")
    a("v_fma_f32 v3, v3, v5, v9")
    a("v_cvt_pk_bf16_f32 v3, v3, v3")
    a(f"ds_write_b16 v6, v3 offset:{L_Z}")
    a("s_branch L_zdone")
    a("L_gather_h:")
    a(f"s_sub_u32 s76, s68, {NATT}")
    a("s_mul_i32 s76, s76, 12288")
    a("s_lshl_b32 s78, s73, 10")
    a("s_add_u32 s78, s78, s76")
    a(f"s_add_u32 s78, s78, {WS_GP}")
    a("s_add_u32 s79, s78, 4096")
    a("s_add_u32 s80, s78, 8192")
    GB = 48
    def h_issue(k):
        for i in range(6):
            a(f"buffer_load_dwordx4 v[{GB+4*i}:{GB+4*i+3}], v{VOV}, s[{SWS}:{SWS+3}], s{78 + i//2} offen offset:{2048*(i%2)} sc1")
    poll("L_pollh", 1, 6, h_issue, lambda k: tagfold([GB + 4*i + kk for i in range(6) for kk in (1, 3)], 9, 10), lambda k: None, sleep=1)
    for m in range(2):
        for k in (0, 2):
            r = GB + 12 * m + k
            a(f"v_add_f32 v{r}, v{r}, v{r+4}")
            a(f"v_add_f32 v{r}, v{r}, v{r+8}")
            bf16r(a, r)
    k0 = math.sqrt(2.0 / math.pi)
    a(f"v_mov_b32 v11, {f32(0.044715)}")
    for g in (GB, GB + 2):
        a(f"v_mul_f32 v10, v{g}, v{g}")
        a(f"v_mul_f32 v10, v10, v{g}")
        a(f"v_fma_f32 v10, v10, v11, v{g}")
        a(f"v_mul_f32 v10, {f32(-2.0*k0*LOG2E)}, v10")
        a("v_exp_f32 v10, v10")
        a("s_nop 0")
        a("v_add_f32 v10, 1.0, v10")
        a("v_rcp_f32 v10, v10")
        a("s_nop 0")
        a(f"v_mul_f32 v{g}, v{g}, v10")
        bf16r(a, g)
        a(f"v_mul_f32 v{g}, v{g}, v{g+12}")
        a(f"v_cvt_pk_bf16_f32 v{g}, v{g}, v{g}")
    a("s_lshl_b32 s79, s73, 7")
    a("v_lshl_add_u32 v6, v0, 1, s79")
    a(f"ds_write_b16 v6, v{GB} offset:{L_Z}")
    a(f"ds_write_b16 v6, v{GB+2} offset:{L_Z+256}")
    a("L_zdone:")
    a("s_waitcnt lgkmcnt(0)")
    a("s_barrier")
    a("s_branch L_finish")
    a("L_notcomb:")
    a(f"s_cmp_lt_u32 s12, {NRED}")
    a("s_cbranch_scc0 L_finish")
    a("s_cmp_ge_u32 s3, 6")
    a("s_cbranch_scc0 L_finish")
    a("s_lshl_b32 s73, s12, 1")
    a("s_add_u32 s73, s73, s3")
    a("s_sub_u32 s73, s73, 6")
    a("v_lshrrev_b32 v6, 2, v0")
    a("v_mul_u32_u24 v6, 9216, v6")
    a("v_and_b32 v7, 3, v0")
    a("s_lshl_b32 s72, s73, 2")
    a("v_add_u32 v7, s72, v7")
    a("v_lshl_add_u32 v6, v7, 4, v6")
    a("v_lshlrev_b32 v7, 1, v7")
    a(f"buffer_load_ushort v2, v7, s[{SX}:{SX+3}], 0 offen")
    a(f"buffer_load_ushort v3, v7, s[{SX}:{SX+3}], 0 offen offset:1152")
    a("v_cmp_gt_u32 vcc, 16, v0")
    a(f"v_mov_b32 v8, {OOB}")
    a("s_nop 0")
    a("v_cndmask_b32 v8, v8, v6, vcc")
    for i in range(7):
        a(f"s_mov_b32 s{20+i}, {WS_YP + 9216*16*i}")
    FB = 16
    def f_issue(k):
        for i in range(3):
            a(f"buffer_load_dwordx4 v[{FB+4*i}:{FB+4*i+3}], v{6 if i < 2 else 8}, s[{SWS}:{SWS+3}], s{24+i} offen sc1")
    def f_check(k):
        a(f"v_mov_b32 v9, s{STAG}")
        a(f"v_cndmask_b32 v{FB+9}, v9, v{FB+9}, vcc")
        a(f"v_cndmask_b32 v{FB+11}, v9, v{FB+11}, vcc")
        tagfold([FB + 4*i + kk for i in range(3) for kk in (1, 3)], 9, 10)
    poll("L_pollf", 1, 3, f_issue, f_check, lambda k: None, sleep=2)
    for i in range(1, 3):
        a(f"v_add_f32 v{FB}, v{FB}, v{FB+4*i}")
        a(f"v_add_f32 v{FB+2}, v{FB+2}, v{FB+4*i+2}")
    def red16(r0, r1):
        a("s_nop 1")
        a(f"v_permlane32_swap_b32 v{r0}, v{r1}")
        a("s_nop 1")
        a(f"v_add_f32 v{r0}, v{r0}, v{r1}")
        for m in ("row_ror:4", "row_ror:8"):
            a("s_nop 1")
            a(f"v_add_f32_dpp v{r0}, v{r0}, v{r0} {m} row_mask:0xf bank_mask:0xf")
        xchg(a, r0, r1, 16)
    red16(FB, FB + 2)
    bf16r(a, FB)
    a("v_cmp_gt_u32 vcc, 32, v0")
    a("v_add_u32 v4, 1152, v7")
    a("s_nop 0")
    a("v_cndmask_b32 v2, v3, v2, vcc")
    a("v_cndmask_b32 v7, v4, v7, vcc")
    a("v_lshlrev_b32 v2, 16, v2")
    stamp(8)
    YS = lambda k: 32 + 16 * k
    def y_issue(k):
        for i in range(4):
            a(f"buffer_load_dwordx4 v[{YS(k)+4*i}:{YS(k)+4*i+3}], v6, s[{SWS}:{SWS+3}], s{20+i} offen sc1")
    def y_post(k):
        B = YS(k)
        a(f"v_add_f32 v12, v{B}, v{B+4}")
        a(f"v_add_f32 v13, v{B+2}, v{B+6}")
        a(f"v_add_f32 v14, v{B+8}, v{B+12}")
        a(f"v_add_f32 v15, v{B+10}, v{B+14}")
    poll("L_polly", nset2, 4, y_issue, lambda k: tagfold([YS(k) + 4*i + kk for i in range(4) for kk in (1, 3)], 9, 10), y_post, sleep=psleep)
    stamp(9)
    a("v_add_f32 v12, v12, v14")
    a("v_add_f32 v13, v13, v15")
    red16(12, 13)
    bf16r(a, 12)
    a("v_add_f32 v2, v2, v12")
    bf16r(a, 2)
    a(f"v_add_f32 v2, v2, v{FB}")
    a("v_cvt_pk_bf16_f32 v2, v2, v2")
    a("s_mov_b32 exec_lo, 0xf")
    a("s_mov_b32 exec_hi, 0xf")
    a(f"buffer_store_short v2, v7, s[{SOUT}:{SOUT+3}], 0 offen")
    a("s_cmp_eq_u32 s73, 0")
    a("s_cbranch_scc0 L_noepoch")
    a(f"s_sub_u32 s72, s{STAG}, {(TAGC - 1):#x}")
    a("v_mov_b32 v4, s72")
    a(f"v_mov_b32 v5, {WS_EPOCH}")
    a("s_mov_b64 exec, 1")
    a(f"buffer_store_dword v4, v5, s[{SWS}:{SWS+3}], 0 offen sc1")
    a("L_noepoch:")
    a("s_mov_b64 exec, -1")
    stamp(10)
    a("L_finish:")
    if ts:
        stamp(11)
        a("s_lshl_b32 s72, s2, 3")
        a("s_add_u32 s72, s72, s3")
        a("s_lshl_b32 s72, s72, 8")
        a(f"s_add_u32 s72, s72, {WS_TS}")
        a("v_lshlrev_b32 v1, 2, v0")
        a(f"buffer_store_dword v{VTS}, v1, s[{SWS}:{SWS+3}], s72 offen")
        if dbgts:
            a(f"s_cmp_lt_u32 s12, {NRED}")
            a("s_cbranch_scc0 L_end")
            a("s_cmp_eq_u32 s3, 7")
            a("s_cbranch_scc0 L_end")
            a("s_load_dwordx2 s[4:5], s[0:1], 80")
            a("s_waitcnt lgkmcnt(0)")
            a("s_mov_b32 s6, 256")
            a("s_mov_b32 s7, 0x20000")
            a(f"v_not_b32 v2, v{VTS}")
            a("s_mov_b64 exec, 0xffff")
            a(f"buffer_atomic_umax v{VTS}, v1, s[4:7], 0 offen")
            a("s_mov_b64 exec, 1")
            a(f"buffer_atomic_umax v2, v1, s[4:7], 0 offen offset:4")
    a("L_end:")
    a("s_endpgm")
    a(".p2align 6")
    a(".type role_tab,@object")
    a("role_tab:")
    for d0, d1 in role_table(pool, ea, ec, eg, par):
        a(f".long {d0:#x}, {d1:#x}")
    a(".size role_tab, 2048")
    out = HEADER
    out += f"; @launch grid=(256,1,1) block=(512,1,1) lds={LDS_SIZE}\n"
    out += '.amdgcn_target "amdgcn-amd-amdhsa--gfx950"\n.text\n'
    out += a.text()
    k = Asm()
    k('.section .rodata,"a"')
    k(".p2align 6")
    k.kd(NAME, NV + 64, NV)
    out += k.text()
    return out

if __name__ == "__main__":
    cfg = json.loads(sys.argv[2]) if len(sys.argv) > 2 else {}
    open(sys.argv[1], "w").write(gen(**cfg))
```

```python
import sys, math, json
from asmlib import *
from gen_v3 import rowsum16, xchg, bf16r, perm_tile, HEADER, NAME, LOG2E, SCALE
import gen_v3
SX, SK, SV, SWQ, SWO, SWG, SWU, SWD, SOUT, SWS = 28, 32, 36, 40, 44, 48, 52, 56, 60, 64
WS_EPOCH = 0
WS_CNT  = 0x4000
WS_QP   = 0x10000
WS_GP   = 0x50000
WS_PART = 0xC0000
PART_STRIDE = 2176
WS_YP   = 0x150000
WS_TS   = 0x300000
WS_SIZE = 0x400000
TAGC = 0x9E3779B9
OOB = 0x40000000
L_RED2 = 0
L_QL  = 6144
L_CNT = 6656
L_Z   = 6720
L_RED = 7424
L_XNB = L_RED + 4096
L_O   = 7424
L_ML  = L_O + 8192
L_BLK = 16384
LDS_SIZE = L_BLK + 147456
assert gen_v3.L_XNB == L_XNB
STAG = 90
SPIN_MAX = 1 << 20
NATT, NCOMB, NRED = 64, 100, 72

def role_table(pool, ea, ec, eg, par, fcomp=0):
    tab = []
    for s in range(32):
        roles = []
        for p in range(8):
            comb = 255
            if p < 2: comb = 2 * s + p
            elif p == 2: comb = 64 + s
            elif p == 3 and s < 4: comb = 96 + s
            gu = 255
            if s >= 4:
                if p != 2: gu = 20 + 7 * (s - 4) + (p if p < 2 else p - 1)
            elif p == 1 or p >= 4: gu = 5 * s + (0 if p == 1 else p - 3)
            red = 255
            if p in (4, 5) or (p == 6 and s < 8): red = (p - 4) * 32 + s
            split = (p - s) & 7
            ex = (ea if comb < 64 else (ec - fcomp if comb < 100 else 0)) + (eg if gu != 255 else 0) + (par if split % 2 == 0 else -par)
            roles.append([comb, gu, red, ex])
        tot = 1024 - pool + sum(r[3] for r in roles)
        cnt = [tot // 8 - r[3] for r in roles]
        i = 7
        while sum(cnt) < 1024 - pool:
            cnt[i] += 1; i -= 1
        base = [sum(cnt[:k]) for k in range(8)]
        for split in range(8):
            p = (split + s) & 7
            tab.append((base[p] | (cnt[p] << 16), roles[p][0] | (roles[p][1] << 8) | (roles[p][2] << 16)))
    gus = sorted((t[1] >> 8) & 255 for t in tab if ((t[1] >> 8) & 255) != 255)
    assert gus == list(range(216)), gus
    assert sorted(t[1] & 255 for t in tab if (t[1] & 255) != 255) == list(range(100))
    assert sorted((t[1] >> 16) & 255 for t in tab if ((t[1] >> 16) & 255) != 255) == list(range(72))
    return tab

def gen(ts=0, th=4, pool=24, ea=4, ec=8, eg=4, par=1, rott=32, nset1=2, nset2=3, lightq=1, psleep=0, nopool=0, dbgts=0, early=0, latedma=0, nw=8, klin=0, wmask=None, w1=24, pmode=0, fearly=None):
    a = Asm()
    a.kernel_begin(NAME)
    VTS = 159
    def stamp(i):
        if not ts: return
        if ts == 2 and i not in (0, 2, 4, 6, 11): return
        a("s_memrealtime s[100:101]")
        a("s_waitcnt lgkmcnt(0)")
        a(f"v_writelane_b32 v{VTS}, s100, {i}")
    def tagfold(regs, acc, tmp):
        regs = list(regs)
        a(f"v_xor_b32 v{acc}, s{STAG}, v{regs[0]}")
        rest = regs[1:]
        while rest:
            if len(rest) >= 2:
                a(f"v_xor_b32 v{tmp}, s{STAG}, v{rest[0]}")
                a(f"v_xor_b32 v{tmp+1}, s{STAG}, v{rest[1]}")
                a(f"v_or3_b32 v{acc}, v{acc}, v{tmp}, v{tmp+1}")
                rest = rest[2:]
            else:
                a(f"v_xor_b32 v{tmp}, s{STAG}, v{rest[0]}")
                a(f"v_or_b32 v{acc}, v{acc}, v{tmp}")
                rest = []
        a(f"v_cmp_ne_u32 s[92:93], 0, v{acc}")
    def poll(name, nsets, nloads, issue, check, post, sleep=0):
        a(f"s_mov_b32 s91, {SPIN_MAX}")
        for k in range(nsets): issue(k)
        a(f"{name}:")
        for k in range(nsets):
            a(f"s_waitcnt vmcnt({(nsets-1)*nloads})")
            check(k)
            a("s_nop 3")
            a("s_cmp_eq_u64 s[92:93], 0")
            a(f"s_cbranch_scc1 {name}_ok{k}")
            a("s_sub_u32 s91, s91, 1")
            a(f"s_cbranch_scc1 {name}_ok{k}")
            if sleep: a(f"s_sleep {sleep}")
            issue(k)
        a(f"s_branch {name}")
        for k in range(nsets):
            a(f"{name}_ok{k}:")
            post(k)
            if k < nsets - 1: a(f"s_branch {name}_done")
        a(f"{name}_done:")
    def selmasks(vc, vt):
        for k, sp in ((2, 4), (4, 6), (8, 8)):
            a(f"v_and_b32 v{vt}, {k}, v{vc}")
            a(f"v_cmp_ne_u32 s[{sp}:{sp+1}], 0, v{vt}")
    def seltree(DA, dst, dstep):
        for k in range(4):
            for r in range(4):
                a(f"v_cndmask_b32 v{DA+8*k+r}, v{DA+8*k+r}, v{DA+8*k+4+r}, s[4:5]")
        for k in range(2):
            for r in range(4):
                a(f"v_cndmask_b32 v{DA+16*k+r}, v{DA+16*k+r}, v{DA+16*k+8+r}, s[6:7]")
        for r in range(4):
            a(f"v_cndmask_b32 v{dst+dstep*r}, v{DA+r}, v{DA+16+r}, s[8:9]")
    VOK, VOV = 1, 2
    VM, VL, VAL, VT0 = 3, 4, 5, 6
    VS, VP, VPT, VQ, VACC, VV = 16, 24, 28, 36, 52, 84
    VCA, VONE, VG, VC = 148, 149, 150, 151
    VWA, VWM, VRA, VSA = 152, 153, 154, 155
    NV = 160
    AK = 0
    a("s_cmp_ge_u32 s2, 256")
    a("s_cbranch_scc1 L_end")
    a("s_load_dwordx16 s[4:19], s[0:1], 0")
    a("s_load_dwordx8 s[20:27], s[0:1], 64")
    a("s_getpc_b64 s[72:73]")
    a("L_pc:")
    a("s_add_u32 s72, s72, role_tab-L_pc")
    a("s_addc_u32 s73, s73, 0")
    a("s_lshl_b32 s74, s2, 3")
    a("s_load_dwordx2 s[68:69], s[72:73], s74")
    a("v_lshrrev_b32 v1, 6, v0")
    a("v_and_b32 v0, 63, v0")
    a("v_readfirstlane_b32 s3, v1")
    if ts: a(f"v_mov_b32 v{VTS}, 0")
    stamp(0)
    a("s_lshr_b32 s73, s2, 2")
    a("s_and_b32 s74, s2, 3")
    a("s_mul_i32 s75, s74, 144")
    a("s_mul_i32 s72, s3, 18")
    a("s_add_u32 s75, s75, s72")
    a("v_lshrrev_b32 v152, 3, v0")
    a("v_add_u32 v153, s75, v152")
    a("v_and_b32 v6, 7, v0")
    a("v_lshlrev_b32 v6, 4, v6")
    a("v_lshl_add_u32 v154, v153, 13, v6")
    a("v_cmp_gt_u32 vcc, 2, v152")
    a(f"v_mov_b32 v155, {OOB}")
    a("s_lshl_b32 s76, s73, 7")
    a("v_cndmask_b32 v155, v155, v154, vcc")
    a("s_add_u32 s77, s76, 65536")
    a("s_add_u32 s78, s76, 131072")
    a("v_lshrrev_b32 v156, 5, v0")
    a("v_mul_u32_u24 v156, 1152, v156")
    a("v_and_b32 v7, 31, v0")
    a("v_lshl_add_u32 v156, v7, 2, v156")
    a(f"v_lshrrev_b32 v{VG}, 4, v0")
    a(f"v_and_b32 v{VC}, 15, v0")
    a("v_and_b32 v6, 3, v0")
    a("v_lshlrev_b32 v6, 2, v6")
    a("v_bfe_u32 v7, v0, 2, 2")
    a("v_add_u32 v6, v6, v7")
    a("v_lshlrev_b32 v6, 8, v6")
    a(f"v_lshl_add_u32 v{VOK}, v{VG}, 4, v6")
    a(f"v_lshlrev_b32 v{VOV}, 4, v0")
    a("s_lshr_b32 s84, s2, 3")
    a("s_lshl_b32 s88, s84, 23")
    a(f"s_mul_i32 s85, s84, {rott}")
    a("s_waitcnt lgkmcnt(0)")
    a(f"s_load_dword s{STAG}, s[26:27], {WS_EPOCH}")
    a.srd(SX, 4, 2304)
    a.srd(SWQ, 10, 576 * 4096 * 2)
    VX, VF, VLT = 116, 126, 8
    VW = 36
    a("s_cmp_eq_u32 s3, 0")
    a("s_cbranch_scc0 L_nox")
    for i in range(9):
        a(f"buffer_load_dword v{VX+i}, v156, s[{SX}:{SX+3}], 0 offen offset:{128*i}")
    a("L_nox:")
    a(f"buffer_load_dwordx4 v[{VW}:{VW+3}], v154, s[{SWQ}:{SWQ+3}], s76 offen nt")
    a(f"buffer_load_dwordx4 v[{VW+4}:{VW+7}], v154, s[{SWQ}:{SWQ+3}], s77 offen nt")
    a(f"buffer_load_dwordx4 v[{VW+8}:{VW+11}], v155, s[{SWQ}:{SWQ+3}], s78 offen nt")
    a.srd(SK, 6, 1 << 28)
    a("s_and_b32 s89, s68, 0xffff")
    a("s_lshr_b32 s80, s68, 16")
    def tile_off(buf):
        su, so = 98 + buf, 94 + 2 * buf
        a(f"s_add_u32 s72, s{su}, s85")
        a("s_and_b32 s72, s72, 1023")
        a("s_lshl_b32 s72, s72, 13")
        a("s_add_u32 s72, s72, s88")
        a(f"s_cmp_lt_u32 s{su}, 1024")
        a(f"s_cselect_b32 s{so}, s72, {OOB}")
        a(f"s_add_u32 s{so+1}, s{so}, 4096")
    def kloads(buf):
        for t in range(2):
            for s in range(4):
                r = AK + 32 * buf + 16 * t + 4 * s
                if klin:
                    a(f"buffer_load_dwordx4 a[{r}:{r+3}], v{VOV}, s[{SK}:{SK+3}], s{94+2*buf+t} offen offset:{1024*s} nt")
                else:
                    a(f"buffer_load_dwordx4 a[{r}:{r+3}], v{VOK}, s[{SK}:{SK+3}], s{94+2*buf+t} offen offset:{64*s} nt")
    def vloads(buf):
        for i in range(8):
            r = VV + 32 * buf + 4 * i
            a(f"buffer_load_dwordx4 v[{r}:{r+3}], v{VOV}, s[{SV}:{SV+3}], s{94+2*buf+i//4} offen offset:{1024*(i%4)} nt")
    a("s_add_u32 s98, s89, s3")
    a("s_sub_u32 s98, s98, 1")
    a("s_add_u32 s99, s98, 7")
    a("s_cmp_eq_u32 s3, 0")
    a("s_cbranch_scc1 L_nok0")
    tile_off(0)
    kloads(0)
    if early:
        a.srd(SV, 8, 1 << 28)
        vloads(0)
    if early >= 2:
        tile_off(1)
        kloads(1)
    a("L_nok0:")
    a.srd(SV, 8, 1 << 28)
    a.srd(SWG, 16, 576 * 4608 * 2)
    a.srd(SWU, 18, 576 * 4608 * 2)
    a.srd(SWO, 12, 4096 * 576 * 2)
    a.srd(SWD, 20, 4608 * 576 * 2)
    a.srd(SOUT, 22, 2304)
    a.srd(SWS, 26, WS_SIZE)
    a("s_lshl_b32 s72, s84, 8")
    a(f"s_add_u32 s72, s72, {WS_CNT}")
    a("s_add_u32 s70, s26, s72")
    a("s_addc_u32 s71, s27, 0")
    a("s_and_b32 s68, s69, 255")
    a("s_bfe_u32 s12, s69, 0x80010")
    a("s_bfe_u32 s69, s69, 0x80008")
    a("s_mov_b32 s18, 0")
    a("s_mov_b32 s19, 0x10000")
    if nopool:
        lo = NATT if nopool == 1 else 0
        a(f"s_sub_u32 s72, s68, {lo}")
        a(f"s_cmp_lt_u32 s72, {NCOMB - lo}")
        a("s_cselect_b32 s19, 0, s19")
    a("s_mov_b32 s82, 0x05040100")
    a("s_mov_b32 s83, 0x07060302")
    a(f"s_mov_b32 s86, {f32(SCALE)}")
    a(f"s_mov_b32 s87, {f32(LOG2E)}")
    a(f"v_mov_b32 v{VCA}, {L_CNT}")
    a(f"v_mov_b32 v{VONE}, 1")
    def dma_block(throttle):
        l1, l2 = a.label("L_dma_wd"), a.label("L_nodma")
        a(f"s_cmp_lt_u32 s68, {NCOMB}")
        a(f"s_cbranch_scc0 {l2}")
        a(f"s_cmp_lt_u32 s68, {NATT}")
        a(f"s_cbranch_scc0 {l1}")
        if latedma: a(f"s_branch {l2}")
        for which in ((1,) if latedma else (0, 1)):
            srd = SWO if which == 0 else SWD
            n = 9 if which == 0 else 18
            if which == 1:
                a(f"{l1}:")
                a(f"s_sub_u32 s91, s68, {NATT}")
                a("s_mul_i32 s91, s91, 147456")
            else:
                a("s_mul_i32 s91, s68, 73728")
            a(f"s_mul_i32 s72, s3, {1024*n}")
            a("s_add_u32 s91, s91, s72")
            for i in range(n):
                if i % 4 == 0:
                    if throttle is not None and i % 8 == 0: a(f"s_waitcnt vmcnt({throttle})")
                    a(f"s_add_u32 m0, s72, {L_BLK + 1024*i}")
                    a(f"s_add_u32 s78, s91, {1024*i}")
                a(f"buffer_load_dwordx4 v{VOV}, s[{srd}:{srd+3}], s78 offen offset:{1024*(i%4)} nt lds")
            if which == 0:
                a(f"s_branch {l2}")
        a(f"{l2}:")
    a("s_cmp_eq_u32 s3, 0")
    a("s_cbranch_scc0 L_A0")
    a("s_and_b32 s72, s2, 15")
    a("s_cmp_lt_u32 s72, 2")
    a("s_cbranch_scc0 L_noinit")
    a("s_lshl_b32 s72, s72, 4")
    a("s_lshr_b32 s91, s2, 4")
    a("s_add_u32 s72, s72, s91")
    a("s_lshl_b32 s72, s72, 8")
    a(f"s_add_u32 s72, s72, {WS_CNT}")
    a(f"v_mov_b32 v6, {1024-pool}")
    a("v_mov_b32 v7, 0")
    a("s_mov_b64 exec, 1")
    a(f"buffer_store_dword v6, v7, s[{SWS}:{SWS+3}], s72 offen sc1")
    a("s_mov_b64 exec, -1")
    a("L_noinit:")
    a("s_waitcnt vmcnt(3)")
    stamp(1)
    gen_v3.ln_compute(a, VX, VF, VLT)
    a("v_mov_b32 v6, 16")
    a("v_mov_b32 v7, 0")
    a(f"ds_write_b64 v{VCA}, v[6:7]")
    a("s_waitcnt vmcnt(0) lgkmcnt(0)")
    a("L_A0:")
    a("v_add_u32 v6, 8, v153")
    a("v_add_u32 v7, 16, v153")
    a("v_min_u32 v7, 575, v7")
    a("v_lshlrev_b32 v153, 1, v153")
    a("v_lshlrev_b32 v6, 1, v6")
    a("v_lshlrev_b32 v7, 1, v7")
    a("s_barrier")
    XR = 8
    for i, r in enumerate((153, 6, 7)):
        a(f"ds_read_u16 v{XR+2*i}, v{r} offset:{L_XNB}")
        a(f"ds_read_u16 v{XR+2*i+1}, v{r} offset:{L_XNB+1152}")
    a("s_waitcnt lgkmcnt(0)")
    a(f"s_add_u32 s{STAG}, s{STAG}, {TAGC:#x}")
    for i in range(6):
        a(f"v_lshlrev_b32 v{XR+i}, 16, v{XR+i}")
    a(f"s_waitcnt vmcnt({8 + 8*early})")
    QA = 16
    for i in range(3):
        for w in range(4):
            a(f"v_lshlrev_b32 v14, 16, v{VW+4*i+w}")
            a(f"v_and_b32 v15, 0xffff0000, v{VW+4*i+w}")
            op = "v_mul_f32" if i == 0 else "v_fmac_f32"
            a(f"{op} v{QA+2*w}, v14, v{XR+2*i}")
            a(f"{op} v{QA+2*w+1}, v15, v{XR+2*i}")
            a(f"{op} v{QA+8+2*w}, v14, v{XR+2*i+1}")
            a(f"{op} v{QA+8+2*w+1}, v15, v{XR+2*i+1}")
    a("s_nop 1")
    for k in range(8):
        a(f"v_permlane32_swap_b32 v{QA+k}, v{QA+8+k}")
    a("s_nop 1")
    for k in range(8):
        a(f"v_add_f32 v{QA+k}, v{QA+k}, v{QA+8+k}")
    a("s_nop 1")
    for k in range(4):
        a(f"v_permlane16_swap_b32 v{QA+k}, v{QA+4+k}")
    a("s_nop 1")
    for k in range(4):
        a(f"v_add_f32 v{QA+k}, v{QA+k}, v{QA+4+k}")
    a("s_nop 1")
    for k in range(4):
        a(f"v_add_f32_dpp v{QA+k}, v{QA+k}, v{QA+k} row_ror:8 row_mask:0xf bank_mask:0xf")
    a("v_lshrrev_b32 v6, 5, v0")
    a("v_lshlrev_b32 v6, 8, v6")
    a("v_and_b32 v7, 7, v0")
    a("v_lshl_add_u32 v6, v7, 5, v6")
    a("v_bfe_u32 v7, v0, 4, 1")
    a("v_lshl_add_u32 v6, v7, 4, v6")
    a("s_lshl_b32 s72, s3, 9")
    a("v_add_u32 v6, s72, v6")
    a(f"ds_write_b128 v6, v[{QA}:{QA+3}] offset:{L_RED}")
    a("s_waitcnt lgkmcnt(0)")
    a("s_barrier")
    stamp(2)
    a("s_cmp_eq_u32 s3, 0")
    a("s_cbranch_scc0 L_prefetch")
    a("v_lshlrev_b32 v6, 3, v0")
    for w in range(8):
        a(f"ds_read_b64 v[{16+2*w}:{17+2*w}], v6 offset:{L_RED + 512*w}")
    a("v_lshrrev_b32 v6, 5, v0")
    a("v_lshlrev_b32 v6, 15, v6")
    a("v_and_b32 v7, 31, v0")
    a("v_lshl_add_u32 v6, v7, 4, v6")
    a("s_lshl_b32 s72, s74, 16")
    a("s_lshl_b32 s91, s73, 9")
    a("s_add_u32 s72, s72, s91")
    a(f"s_add_u32 s72, s72, {WS_QP}")
    a(f"v_mov_b32 v9, s{STAG}")
    a(f"v_mov_b32 v11, s{STAG}")
    a("s_waitcnt lgkmcnt(0)")
    a("v_add_f32 v8, v16, v18")
    a("v_add_f32 v10, v17, v19")
    for w in range(2, 8):
        a(f"v_add_f32 v8, v8, v{16+2*w}")
        a(f"v_add_f32 v10, v10, v{17+2*w}")
    a(f"buffer_store_dwordx4 v[8:11], v6, s[{SWS}:{SWS+3}], s72 offen sc1")
    stamp(3)
    a("s_lshr_b32 s72, s84, 4")
    a("s_lshl_b32 s72, s72, 15")
    a("s_and_b32 s91, s84, 15")
    a("s_lshl_b32 s91, s91, 11")
    a("s_add_u32 s72, s72, s91")
    a(f"s_add_u32 s76, s72, {WS_QP}")
    for rb in range(1, 4):
        a(f"s_add_u32 s{76+rb}, s76, {65536*rb}")
    if lightq:
        a("v_and_b32 v6, 3, v0")
        a("v_lshlrev_b32 v6, 16, v6")
        a("v_bfe_u32 v7, v0, 2, 2")
        a("v_lshl_add_u32 v6, v7, 9, v6")
        poll("L_pollq0", 1, 1,
             lambda k: a(f"buffer_load_dwordx2 v[12:13], v6, s[{SWS}:{SWS+3}], s76 offen sc1"),
             lambda k: a(f"v_cmp_ne_u32 s[92:93], s{STAG}, v13"),
             lambda k: None, sleep=4)
    PB = 16
    def q_issue(k):
        for rb in range(4):
            for h in range(2):
                r = PB + 8 * rb + 4 * h
                a(f"buffer_load_dwordx4 v[{r}:{r+3}], v{VOV}, s[{SWS}:{SWS+3}], s{76+rb} offen offset:{1024*h} sc1")
    poll("L_pollq", 1, 8, q_issue, lambda k: tagfold([PB + 4*i + kk for i in range(8) for kk in (1, 3)], 9, 10), lambda k: None, sleep=4)
    for h in range(2):
        for k in (0, 2):
            r = PB + 4 * h + k
            a(f"v_add_f32 v{r}, v{r}, v{r+8}")
            a(f"v_add_f32 v{r+16}, v{r+16}, v{r+24}")
            a(f"v_add_f32 v{r}, v{r}, v{r+16}")
        a(f"v_cvt_pk_bf16_f32 v{8+h}, v{PB+4*h}, v{PB+4*h+2}")
    a("v_lshlrev_b32 v6, 2, v0")
    a(f"ds_write_b32 v6, v8 offset:{L_QL}")
    a(f"ds_write_b32 v6, v9 offset:{L_QL+256}")
    a("s_waitcnt lgkmcnt(0)")
    stamp(12)
    a("s_branch L_B")
    a("L_prefetch:")
    a("s_mul_i32 s74, s69, 171")
    a("s_lshr_b32 s74, s74, 9")
    a("s_mul_i32 s72, s74, 3")
    a("s_sub_u32 s75, s69, s72")
    a("s_cmp_lt_u32 s69, 216")
    a("s_cselect_b32 s79, 1, 0")
    a("s_cmp_lt_u32 s3, 7")
    a("s_cselect_b32 s79, s79, 0")
    a("s_cmp_eq_u32 s79, 0")
    a("s_cbranch_scc1 L_nogu1")
    a("s_mul_i32 s76, s75, 192")
    a("s_lshl_b32 s72, s3, 5")
    a("s_add_u32 s76, s76, s72")
    a("s_sub_u32 s76, s76, 32")
    a(f"v_lshl_add_u32 v6, v{VG}, 3, s76")
    a("v_mul_u32_u24 v7, 9216, v6")
    a(f"v_lshl_add_u32 v7, v{VC}, 4, v7")
    a("s_lshr_b32 s77, s74, 1")
    a("s_lshl_b32 s77, s77, 8")
    a("v_and_b32 v8, 1, v0")
    a("v_mul_u32_u24 v8, 1152, v8")
    a("v_lshl_add_u32 v8, v6, 1, v8")
    a(f"ds_read_b128 v[12:15], v8 offset:{L_XNB}")
    a(f"s_waitcnt vmcnt({th})")
    a("s_bitcmp1_b32 s74, 0")
    a("s_cbranch_scc1 L_gu_up")
    for which, srd in ((0, SWG), (1, SWU)):
        if which: a("L_gu_up:")
        for i in range(8):
            a(f"buffer_load_dwordx4 v[{VACC+4*i}:{VACC+4*i+3}], v7, s[{srd}:{srd+3}], s77 offen nt")
            if i < 7: a("s_add_u32 s77, s77, 9216")
        if not which: a("s_branch L_nogu1")
    a("L_nogu1:")
    a(f"s_waitcnt vmcnt({th})")
    if early == 0:
        vloads(0)
    elif early == 1:
        tile_off(1)
        kloads(1)
    else:
        vloads(1)
    a("s_cmp_eq_u32 s79, 0")
    a("s_cbranch_scc1 L_nogu2")
    selmasks(VC, 6)
    a("s_waitcnt vmcnt(8) lgkmcnt(0)")
    DA = 16
    for j in range(8):
        tb = 8 if (j & 1) else 48
        perm_tile(a, VACC, tb, j)
        a("s_nop 1")
        a(f"v_mfma_f32_16x16x32_bf16 {vr(DA+4*j,4)}, {vr(tb,4)}, v[12:15], 0")
    a("s_lshl_b32 s72, s3, 10")
    a("s_sub_u32 s72, s72, 1024")
    a(f"v_add_u32 v6, s72, v{VOV}")
    a("s_nop 7")
    seltree(DA, 8, 1)
    a(f"ds_write_b128 v6, v[8:11] offset:{L_RED2}")
    a("L_nogu2:")
    if early == 0:
        a(f"s_waitcnt vmcnt({th})")
        tile_off(1)
        kloads(1)
    if early <= 1:
        a(f"s_waitcnt vmcnt({th})")
        vloads(1)
    dma_block(th)
    a("s_waitcnt lgkmcnt(0)")
    stamp(3)
    a("L_B:")
    a("s_barrier")
    stamp(4)
    a("v_and_b32 v6, 1, v0")
    a("v_lshlrev_b32 v6, 8, v6")
    a(f"v_lshl_add_u32 v6, v{VG}, 4, v6")
    for s in range(4):
        a(f"ds_read_b128 v[{VQ+4*s}:{VQ+4*s+3}], v6 offset:{L_QL + 64*s}")
    a("s_cmp_eq_u32 s3, 0")
    a("s_cbranch_scc0 L_w0_done")
    a("s_add_u32 s98, s89, 14")
    a("s_add_u32 s99, s89, 15")
    tile_off(0)
    kloads(0)
    vloads(0)
    tile_off(1)
    kloads(1)
    vloads(1)
    dma_block(None)
    a("L_w0_done:")
    a("s_cmp_eq_u32 s3, 7")
    a("s_cbranch_scc0 L_nogu3")
    a("s_cmp_lt_u32 s69, 216")
    a("s_cbranch_scc0 L_nogu3")
    for w in range(6):
        a(f"ds_read_b128 v[{VACC+4*w}:{VACC+4*w+3}], v{VOV} offset:{L_RED2 + 1024*w}")
    a(f"v_lshlrev_b32 v6, 9, v{VG}")
    a(f"v_lshl_add_u32 v6, v{VC}, 3, v6")
    a("s_lshl_b32 s72, s69, 11")
    a(f"s_add_u32 s72, s72, {WS_GP}")
    a("s_waitcnt lgkmcnt(0)")
    for w in range(1, 6):
        for r in range(4):
            a(f"v_add_f32 v{VACC+r}, v{VACC+r}, v{VACC+4*w+r}")
    for r in range(4):
        a(f"v_mov_b32 v{8+2*r}, v{VACC+r}")
        a(f"v_mov_b32 v{9+2*r}, s{STAG}")
    for r in range(4):
        a(f"buffer_store_dwordx2 v[{8+2*r}:{9+2*r}], v6, s[{SWS}:{SWS+3}], s72 offen offset:{128*r} sc1")
    a("L_nogu3:")
    if nw < 8 or wmask is not None:
        mk = wmask if wmask is not None else (1 << nw) - 1
        a(f"s_movk_i32 s72, {mk}")
        a("s_bitcmp0_b32 s72, s3")
        a("s_cselect_b32 s80, 0, s80")
        a("s_cselect_b32 s19, 0, s19")
        a("s_cselect_b32 s72, 0, 1")
        a(f"v_mov_b32 v{VONE}, s72")
    a(f"v_lshl_add_u32 v{VWA}, v{VC}, 2, v{VG}")
    a(f"v_lshlrev_b32 v{VWA}, 7, v{VWA}")
    a("s_lshl_b32 s72, s3, 10")
    a(f"v_add_u32 v{VWA}, s72, v{VWA}")
    a("s_lshl_b32 s72, s3, 4")
    a(f"v_lshl_add_u32 v{VWM}, v{VC}, 3, s72")
    a("s_and_b32 s72, s3, 1")
    a("s_lshl_b32 s72, s72, 6")
    a("v_add_u32 v6, s72, v0")
    a("v_lshrrev_b32 v7, 5, v6")
    a("v_bfe_u32 v16, v6, 3, 2")
    a("v_and_b32 v17, 7, v6")
    a("v_lshlrev_b32 v7, 5, v7")
    a("v_lshl_add_u32 v7, v17, 2, v7")
    a("v_add_u32 v7, v7, v16")
    a("s_bfe_u32 s13, s3, 0x10001")
    a("s_lshl_b32 s72, s13, 9")
    a(f"v_lshl_add_u32 v{VRA}, v7, 2, s72")
    a("s_lshl_b32 s72, s13, 10")
    a(f"v_lshl_add_u32 v{VSA}, v6, 3, s72")
    a(f"s_mul_i32 s81, s2, {PART_STRIDE}")
    a(f"s_add_u32 s81, s81, {WS_PART}")
    for i in range(32):
        a(f"v_mov_b32 v{VACC+i}, 0")
    a(f"v_mov_b32 v{VM}, 0xf149f2ca")
    a(f"v_mov_b32 v{VL}, 0")
    a("s_waitcnt lgkmcnt(0)")
    a("L_loop:")
    for buf in range(2):
        a(f"s_cmp_ge_u32 s{98+buf}, 1024")
        a("s_cbranch_scc1 L_loop_done")
        lt = a.label("L_have")
        if pmode:
            lp, lq, lx = a.label("L_pool"), a.label("L_grabbed"), a.label("L_chk")
            a("s_cmp_lg_u32 s18, 0")
            a(f"s_cbranch_scc1 {lp}")
        a("s_mov_b64 exec, 1")
        a(f"ds_add_rtn_u32 v15, v{VCA}, v{VONE}")
        a("s_mov_b64 exec, -1")
        if pmode:
            a(f"s_branch {lq}")
            a(f"{lp}:")
            a(f"s_mov_b32 s{98+buf}, 1")
            a(f"s_atomic_add s{98+buf}, s[70:71], 0 glc")
            a(f"{lq}:")
        a(f"s_waitcnt vmcnt({w1})")
        for s in range(4):
            for t in range(2):
                r = AK + 32 * buf + 16 * t + 4 * s
                c = "0" if s == 0 else vr(VS + 4 * t, 4)
                a(f"v_mfma_f32_16x16x32_bf16 {vr(VS+4*t,4)}, a[{r}:{r+3}], {vr(VQ+4*s,4)}, {c}")
        a("s_waitcnt lgkmcnt(0)")
        if pmode:
            a("s_cmp_lg_u32 s18, 0")
            a(f"s_cbranch_scc1 {lx}")
        a("v_readfirstlane_b32 s72, v15")
        a("s_nop 3")
        a(f"s_add_u32 s{98+buf}, s72, s89")
        a("s_cmp_lt_u32 s72, s80")
        a(f"s_cbranch_scc1 {lt}")
        a(f"s_mov_b32 s{98+buf}, 1024")
        if pool:
            a("s_cmp_ge_u32 s72, s19")
            a(f"s_cbranch_scc1 {lt}")
            a(f"s_mov_b32 s{98+buf}, 1")
            a(f"s_atomic_add s{98+buf}, s[70:71], 0 glc")
            if pmode: a("s_mov_b32 s18, 1")
            a("s_waitcnt lgkmcnt(0)")
            if pmode: a(f"{lx}:")
            a(f"s_cmp_lt_u32 s{98+buf}, 1024")
            a(f"s_cbranch_scc1 {lt}")
            if pmode: a("s_mov_b32 s18, 0")
            a("v_mov_b32 v15, 0x10000")
            a("s_mov_b64 exec, 1")
            a(f"ds_add_u32 v{VCA}, v15")
            a("s_mov_b64 exec, -1")
        a(f"{lt}:")
        tile_off(buf)
        kloads(buf)
        T = VT0
        for x in range(4):
            a(f"v_cvt_pk_bf16_f32 v{T+x}, v{VS+2*x}, v{VS+2*x+1}")
        for x in range(4):
            a(f"v_lshlrev_b32 v{VS+2*x}, 16, v{T+x}")
            a(f"v_and_b32 v{VS+2*x+1}, 0xffff0000, v{T+x}")
        for x in range(8):
            a(f"v_mul_f32 v{VS+x}, s86, v{VS+x}")
        for x in range(4):
            a(f"v_cvt_pk_bf16_f32 v{T+x}, v{VS+2*x}, v{VS+2*x+1}")
        for x in range(4):
            a(f"v_lshlrev_b32 v{VS+2*x}, 16, v{T+x}")
            a(f"v_and_b32 v{VS+2*x+1}, 0xffff0000, v{T+x}")
        a(f"v_max3_f32 v{T}, v{VS}, v{VS+1}, v{VS+2}")
        a(f"v_max3_f32 v{T+1}, v{VS+3}, v{VS+4}, v{VS+5}")
        a(f"v_max3_f32 v{T}, v{T}, v{VS+6}, v{VS+7}")
        a(f"v_max3_f32 v{T}, v{T}, v{T+1}, v{VM}")
        xchg(a, T, T + 1, 16, "max")
        xchg(a, T, T + 1, 32, "max")
        a(f"v_sub_f32 v{VAL}, v{VM}, v{T}")
        a(f"v_mul_f32 v{VAL}, s87, v{VAL}")
        a(f"v_exp_f32 v{VAL}, v{VAL}")
        a(f"v_mov_b32 v{VM}, v{T}")
        a(f"v_mul_f32 v{T+1}, s87, v{T}")
        for x in range(8):
            a(f"v_fma_f32 v{VS+x}, v{VS+x}, s87, -v{T+1}")
        for x in range(8):
            a(f"v_exp_f32 v{VS+x}, v{VS+x}")
        a(f"v_cmp_neq_f32 vcc, 1.0, v{VAL}")
        a(f"v_mul_f32 v{VL}, v{VL}, v{VAL}")
        for x in range(4):
            a(f"v_cvt_pk_bf16_f32 v{VP+x}, v{VS+2*x}, v{VS+2*x+1}")
        a(f"v_add_f32 v{T}, v{VS}, v{VS+1}")
        a(f"v_add_f32 v{T+1}, v{VS+2}, v{VS+3}")
        a(f"v_add_f32 v{T+2}, v{VS+4}, v{VS+5}")
        a(f"v_add_f32 v{T+3}, v{VS+6}, v{VS+7}")
        a(f"v_add_f32 v{T}, v{T}, v{T+1}")
        a(f"v_add_f32 v{T+2}, v{T+2}, v{T+3}")
        a(f"v_add_f32 v{T}, v{T}, v{T+2}")
        a(f"v_add_f32 v{VL}, v{VL}, v{T}")
        lab = a.label("L_noscale")
        a(f"s_cbranch_vccz {lab}")
        for i in range(32):
            a(f"v_mul_f32 v{VACC+i}, v{VACC+i}, v{VAL}")
        a(f"{lab}:")
        a("s_waitcnt vmcnt(24)")
        for j in range(8):
            tb = VPT + 4 * (j & 1)
            perm_tile(a, VV + 32 * buf, tb, j)
            a("s_nop 1")
            a(f"v_mfma_f32_16x16x32_bf16 {vr(VACC+4*j,4)}, {vr(tb,4)}, {vr(VP,4)}, {vr(VACC+4*j,4)}")
        vloads(buf)
    a("s_branch L_loop")
    a("L_loop_done:")
    stamp(5)
    a("s_mov_b32 exec_lo, 0x00030003")
    a("s_mov_b32 exec_hi, 0x00030003")
    for j in range(8):
        a(f"ds_write_b128 v{VWA}, {vr(VACC+4*j,4)} offset:{L_O+16*j}")
    a("s_mov_b64 exec, -1")
    xchg(a, VL, VT0, 16)
    xchg(a, VL, VT0, 32)
    a(f"v_mov_b32 v10, v{VM}")
    a(f"v_mov_b32 v11, v{VL}")
    a("s_mov_b64 exec, 3")
    a(f"ds_write_b64 v{VWM}, v[10:11] offset:{L_ML}")
    a("s_mov_b64 exec, -1")
    a("s_lshl_b32 s72, s13, 3")
    a("v_mov_b32 v8, s72")
    a("s_lshl_b32 s72, s13, 4")
    a("v_mov_b32 v7, s72")
    a(f"v_mov_b32 v13, s{STAG}")
    a(f"v_mov_b32 v41, s{STAG}")
    a(f"v_mov_b32 v43, s{STAG}")
    if latedma:
        a(f"s_cmp_lt_u32 s68, {NATT}")
        a("s_cbranch_scc0 L_ld_done")
        a("s_mul_i32 s91, s68, 73728")
        a("L_ld_loop:")
        a("s_mov_b64 exec, 1")
        a(f"ds_add_rtn_u32 v15, v{VCA}, v{VONE} offset:4")
        a("s_mov_b64 exec, -1")
        a("s_waitcnt lgkmcnt(0)")
        a("v_readfirstlane_b32 s72, v15")
        a("s_nop 3")
        a(f"s_cmp_lt_u32 s72, {72 // latedma}")
        a("s_cbranch_scc0 L_ld_done")
        a(f"s_mul_i32 s72, s72, {1024*latedma}")
        a("s_add_u32 s79, s91, s72")
        for i in range(latedma):
            if i % 4 == 0:
                a(f"s_add_u32 m0, s72, {L_BLK + 1024*i}")
                a(f"s_add_u32 s78, s79, {1024*i}")
            a(f"buffer_load_dwordx4 v{VOV}, s[{SWO}:{SWO+3}], s78 offen offset:{1024*(i%4)} nt lds")
        a(f"s_waitcnt vmcnt({latedma})")
        a("s_branch L_ld_loop")
        a("L_ld_done:")
        a("s_waitcnt lgkmcnt(0)")
    else:
        a("s_waitcnt vmcnt(0) lgkmcnt(0)")
    a("s_barrier")
    stamp(6)
    a("s_cmp_lt_u32 s3, 4")
    a("s_cbranch_scc0 L_nopub")
    for w in range(8):
        a(f"ds_read_b64 v[{24+2*w}:{25+2*w}], v8 offset:{L_ML+16*w}")
    for w in range(8):
        a(f"ds_read_b32 v{16+w}, v{VRA} offset:{L_O+1024*w}")
    a("s_waitcnt lgkmcnt(8)")
    a("v_max3_f32 v40, v24, v26, v28")
    a("v_max3_f32 v9, v30, v32, v34")
    a("v_max3_f32 v40, v40, v36, v38")
    a("v_max_f32 v40, v40, v9")
    a("v_mul_f32 v9, s87, v40")
    for w in range(8):
        a(f"v_fma_f32 v{24+2*w}, v{24+2*w}, s87, -v9")
    for w in range(8):
        a(f"v_exp_f32 v{24+2*w}, v{24+2*w}")
    a("s_waitcnt lgkmcnt(0)")
    a("v_mul_f32 v12, v16, v24")
    a("v_mul_f32 v14, v17, v26")
    for w in range(2, 8, 2):
        a(f"v_fmac_f32 v12, v{16+w}, v{24+2*w}")
        a(f"v_fmac_f32 v14, v{17+w}, v{26+2*w}")
    a("v_add_f32 v12, v12, v14")
    a(f"buffer_store_dwordx2 v[12:13], v{VSA}, s[{SWS}:{SWS+3}], s81 offen sc1")
    a("v_mul_f32 v42, v25, v24")
    for w in range(1, 8):
        a(f"v_fmac_f32 v42, v{25+2*w}, v{24+2*w}")
    a("s_mov_b64 exec, 1")
    a(f"buffer_store_dwordx4 v[40:43], v7, s[{SWS}:{SWS+3}], s81 offen offset:2048 sc1")
    a("s_mov_b64 exec, -1")
    if latedma:
        a("s_waitcnt vmcnt(2)")
        a("s_branch L_pubdone")
    a("L_nopub:")
    if latedma:
        a("s_waitcnt vmcnt(0)")
        a("L_pubdone:")
    stamp(7)
    a(f"s_cmp_lt_u32 s68, {NCOMB}")
    a("s_cbranch_scc0 L_notcomb")
    if latedma:
        a("s_barrier")
    a("s_cmp_eq_u32 s3, 7")
    a("s_cbranch_scc1 L_finish")
    a("s_and_b32 s72, s3, 6")
    a("s_cmp_eq_u32 s72, 4")
    a("s_cbranch_scc1 L_gather")
    a("s_min_u32 s73, s3, 4")
    a(f"v_mul_u32_u24 v46, 9216, v{VG}")
    a("s_lshl_b32 s72, s73, 4")
    a(f"v_add_u32 v47, s72, v{VC}")
    a("v_min_u32 v47, 71, v47")
    a("v_lshl_add_u32 v46, v47, 4, v46")
    a(f"v_add_u32 v46, {L_BLK}, v46")
    TMP = 48
    def prep(ks):
        for i in range(8):
            a(f"ds_read_b128 v[{TMP+4*i}:{TMP+4*i+3}], v46 offset:{1152*i}")
        a("v_add_u32 v46, 36864, v46")
        a("s_waitcnt lgkmcnt(0)")
        for j in range(8):
            if ks < 2:
                perm_tile(a, TMP, VV + 32 * ks + 4 * j, j)
            else:
                perm_tile(a, TMP, 8, j)
                for x in range(4):
                    a(f"v_accvgpr_write_b32 a{32*(ks-2)+4*j+x}, v{8+x}")
    prep(0); prep(1)
    a(f"s_cmp_lt_u32 s68, {NATT}")
    a("s_cbranch_scc1 L_prep_done")
    prep(2); prep(3)
    a("L_prep_done:")
    selmasks(VC, 8)
    a("s_lshl_b32 s72, s73, 7")
    a(f"v_lshl_add_u32 v46, v{VG}, 5, s72")
    a("v_mov_b32 v8, 576")
    a("v_cmp_lt_u32 s[10:11], v46, v8")
    a("v_lshlrev_b32 v46, 4, v46")
    a(f"v_lshl_add_u32 v46, v{VC}, 3, v46")
    a("s_mul_i32 s72, s68, 9216")
    a(f"s_add_u32 s72, s72, {WS_YP}")
    a("v_and_b32 v47, 1, v0")
    a("v_lshlrev_b32 v47, 8, v47")
    a(f"v_lshl_add_u32 v47, v{VG}, 4, v47")
    for r in range(4):
        a(f"v_mov_b32 v{25+2*r}, s{STAG}")
    a("s_barrier")
    stamp(9)
    for ks in range(4):
        a(f"ds_read_b128 v[{8+4*ks}:{11+4*ks}], v47 offset:{L_Z + 64*ks}")
    DA = 48
    def mm(ks):
        a(f"s_waitcnt lgkmcnt({3-ks})")
        for j in range(8):
            A = f"a[{32*(ks-2)+4*j}:{32*(ks-2)+4*j+3}]" if ks >= 2 else vr(VV + 32*ks + 4*j, 4)
            c = "0" if ks == 0 else vr(DA + 4*j, 4)
            a(f"v_mfma_f32_16x16x32_bf16 {vr(DA+4*j,4)}, {A}, v[{8+4*ks}:{11+4*ks}], {c}")
    mm(0); mm(1)
    a(f"s_cmp_lt_u32 s68, {NATT}")
    a("s_cbranch_scc1 L_mm_done")
    mm(2); mm(3)
    a("L_mm_done:")
    a("s_nop 6")
    seltree(DA, 24, 2)
    a("s_mov_b64 exec, s[10:11]")
    for r in range(4):
        a(f"buffer_store_dwordx2 v[{24+2*r}:{25+2*r}], v46, s[{SWS}:{SWS+3}], s72 offen offset:{128*r} sc1")
    a("s_mov_b64 exec, -1")
    stamp(10)
    a("s_branch L_finish")
    a("L_gather:")
    a("s_sub_u32 s73, s3, 4")
    a(f"s_cmp_lt_u32 s68, {NATT}")
    a("s_cbranch_scc0 L_gather_h")
    a("s_lshr_b32 s76, s68, 2")
    a("s_lshl_b32 s78, s73, 4")
    a("s_add_u32 s78, s78, s76")
    a(f"s_mul_i32 s78, s78, {8*PART_STRIDE}")
    a(f"s_add_u32 s20, s78, {WS_PART}")
    for s in range(1, 8):
        a(f"s_add_u32 s{20+s}, s20, {PART_STRIDE*s}")
    a("s_and_b32 s79, s68, 3")
    a("s_lshl_b32 s79, s79, 9")
    a("v_lshl_add_u32 v7, v0, 3, s79")
    a("s_bfe_u32 s79, s68, 0x10001")
    a("s_lshl_b32 s79, s79, 4")
    a("s_add_u32 s79, s79, 2048")
    a("v_and_b32 v8, 7, v0")
    a(f"v_mul_u32_u24 v8, {PART_STRIDE}, v8")
    a("v_add_u32 v8, s79, v8")
    a("s_lshl_b32 s79, s73, 8")
    a("v_lshl_add_u32 v6, v0, 1, s79")
    GS = lambda k: 48 + 20 * k
    def g_issue(k):
        a(f"buffer_load_dwordx4 v[{GS(k)}:{GS(k)+3}], v8, s[{SWS}:{SWS+3}], s20 offen sc1")
        for s in range(8):
            a(f"buffer_load_dwordx2 v[{GS(k)+4+2*s}:{GS(k)+5+2*s}], v7, s[{SWS}:{SWS+3}], s{20+s} offen sc1")
    def g_check(k):
        tagfold([GS(k) + 1, GS(k) + 3] + [GS(k) + 5 + 2*s for s in range(8)], 9, 10)
    def g_post(k):
        B = GS(k)
        a(f"v_mov_b32 v2, v{B}")
        for m in ("quad_perm:[1,0,3,2]", "quad_perm:[2,3,0,1]", "row_half_mirror"):
            a("s_nop 1")
            a(f"v_max_f32_dpp v2, v2, v2 {m} row_mask:0xf bank_mask:0xf")
        a(f"v_sub_f32 v3, v{B}, v2")
        a("v_mul_f32 v3, s87, v3")
        a("v_exp_f32 v3, v3")
        a("s_nop 0")
        a(f"v_mul_f32 v4, v3, v{B+2}")
        for m in ("quad_perm:[1,0,3,2]", "quad_perm:[2,3,0,1]", "row_half_mirror"):
            a("s_nop 1")
            a(f"v_add_f32_dpp v4, v4, v4 {m} row_mask:0xf bank_mask:0xf")
        for s in range(8):
            a(f"v_readlane_b32 s{4+s}, v3, {s}")
        a("v_rcp_f32 v5, v4")
        a(f"v_mul_f32 v2, s4, v{B+4}")
        a(f"v_mul_f32 v9, s5, v{B+6}")
        for s in range(2, 8, 2):
            a(f"v_fmac_f32 v2, s{4+s}, v{B+4+2*s}")
            a(f"v_fmac_f32 v9, s{5+s}, v{B+6+2*s}")
    poll("L_pollp", nset1, 9, g_issue, g_check, g_post, sleep=psleep)
    stamp(8)
    a("v_add_f32 v3, v2, v9")
    a("v_mul_f32 v9, v3, v5")
    a("v_fma_f32 v3, -v9, v4, v3")
    a("v_fma_f32 v3, v3, v5, v9")
    a("v_cvt_pk_bf16_f32 v3, v3, v3")
    a(f"ds_write_b16 v6, v3 offset:{L_Z}")
    a("s_branch L_zdone")
    a("L_gather_h:")
    a(f"s_sub_u32 s76, s68, {NATT}")
    a("s_mul_i32 s76, s76, 12288")
    a("s_lshl_b32 s78, s73, 10")
    a("s_add_u32 s78, s78, s76")
    a(f"s_add_u32 s78, s78, {WS_GP}")
    a("s_add_u32 s79, s78, 4096")
    a("s_add_u32 s80, s78, 8192")
    GB = 48
    def h_issue(k):
        for i in range(6):
            a(f"buffer_load_dwordx4 v[{GB+4*i}:{GB+4*i+3}], v{VOV}, s[{SWS}:{SWS+3}], s{78 + i//2} offen offset:{2048*(i%2)} sc1")
    poll("L_pollh", 1, 6, h_issue, lambda k: tagfold([GB + 4*i + kk for i in range(6) for kk in (1, 3)], 9, 10), lambda k: None, sleep=1)
    for m in range(2):
        for k in (0, 2):
            r = GB + 12 * m + k
            a(f"v_add_f32 v{r}, v{r}, v{r+4}")
            a(f"v_add_f32 v{r}, v{r}, v{r+8}")
            bf16r(a, r)
    k0 = math.sqrt(2.0 / math.pi)
    a(f"v_mov_b32 v11, {f32(0.044715)}")
    for g in (GB, GB + 2):
        a(f"v_mul_f32 v10, v{g}, v{g}")
        a(f"v_mul_f32 v10, v10, v{g}")
        a(f"v_fma_f32 v10, v10, v11, v{g}")
        a(f"v_mul_f32 v10, {f32(-2.0*k0*LOG2E)}, v10")
        a("v_exp_f32 v10, v10")
        a("s_nop 0")
        a("v_add_f32 v10, 1.0, v10")
        a("v_rcp_f32 v10, v10")
        a("s_nop 0")
        a(f"v_mul_f32 v{g}, v{g}, v10")
        bf16r(a, g)
        a(f"v_mul_f32 v{g}, v{g}, v{g+12}")
        a(f"v_cvt_pk_bf16_f32 v{g}, v{g}, v{g}")
    a("s_lshl_b32 s79, s73, 7")
    a("v_lshl_add_u32 v6, v0, 1, s79")
    a(f"ds_write_b16 v6, v{GB} offset:{L_Z}")
    a(f"ds_write_b16 v6, v{GB+2} offset:{L_Z+256}")
    a("L_zdone:")
    a("s_waitcnt lgkmcnt(0)")
    a("s_barrier")
    a("s_branch L_finish")
    a("L_notcomb:")
    a(f"s_cmp_lt_u32 s12, {NRED}")
    a("s_cbranch_scc0 L_finish")
    a("s_cmp_ge_u32 s3, 6")
    a("s_cbranch_scc0 L_finish")
    a("s_lshl_b32 s73, s12, 1")
    a("s_add_u32 s73, s73, s3")
    a("s_sub_u32 s73, s73, 6")
    a("v_lshrrev_b32 v6, 2, v0")
    a("v_mul_u32_u24 v6, 9216, v6")
    a("v_and_b32 v7, 3, v0")
    a("s_lshl_b32 s72, s73, 2")
    a("v_add_u32 v7, s72, v7")
    a("v_lshl_add_u32 v6, v7, 4, v6")
    a("v_lshlrev_b32 v7, 1, v7")
    a(f"buffer_load_ushort v2, v7, s[{SX}:{SX+3}], 0 offen")
    a(f"buffer_load_ushort v3, v7, s[{SX}:{SX+3}], 0 offen offset:1152")
    a("v_cmp_gt_u32 vcc, 16, v0")
    a(f"v_mov_b32 v8, {OOB}")
    a("s_nop 0")
    a("v_cndmask_b32 v8, v8, v6, vcc")
    for i in range(7):
        a(f"s_mov_b32 s{20+i}, {WS_YP + 9216*16*i}")
    FB = 16
    def f_issue(k):
        for i in range(3):
            a(f"buffer_load_dwordx4 v[{FB+4*i}:{FB+4*i+3}], v{6 if i < 2 else 8}, s[{SWS}:{SWS+3}], s{24+i} offen sc1")
    def f_check(k):
        a(f"v_mov_b32 v9, s{STAG}")
        a(f"v_cndmask_b32 v{FB+9}, v9, v{FB+9}, vcc")
        a(f"v_cndmask_b32 v{FB+11}, v9, v{FB+11}, vcc")
        tagfold([FB + 4*i + kk for i in range(3) for kk in (1, 3)], 9, 10)
    poll("L_pollf", 1, 3, f_issue, f_check, lambda k: None, sleep=2)
    for i in range(1, 3):
        a(f"v_add_f32 v{FB}, v{FB}, v{FB+4*i}")
        a(f"v_add_f32 v{FB+2}, v{FB+2}, v{FB+4*i+2}")
    def red16(r0, r1):
        a("s_nop 1")
        a(f"v_permlane32_swap_b32 v{r0}, v{r1}")
        a("s_nop 1")
        a(f"v_add_f32 v{r0}, v{r0}, v{r1}")
        for m in ("row_ror:4", "row_ror:8"):
            a("s_nop 1")
            a(f"v_add_f32_dpp v{r0}, v{r0}, v{r0} {m} row_mask:0xf bank_mask:0xf")
        xchg(a, r0, r1, 16)
    red16(FB, FB + 2)
    bf16r(a, FB)
    a("v_cmp_gt_u32 vcc, 32, v0")
    a("v_add_u32 v4, 1152, v7")
    a("s_nop 0")
    a("v_cndmask_b32 v2, v3, v2, vcc")
    a("v_cndmask_b32 v7, v4, v7, vcc")
    a("v_lshlrev_b32 v2, 16, v2")
    stamp(8)
    YS = lambda k: 32 + 16 * k
    def y_issue(k):
        for i in range(4):
            a(f"buffer_load_dwordx4 v[{YS(k)+4*i}:{YS(k)+4*i+3}], v6, s[{SWS}:{SWS+3}], s{20+i} offen sc1")
    def y_post(k):
        B = YS(k)
        a(f"v_add_f32 v12, v{B}, v{B+4}")
        a(f"v_add_f32 v13, v{B+2}, v{B+6}")
        a(f"v_add_f32 v14, v{B+8}, v{B+12}")
        a(f"v_add_f32 v15, v{B+10}, v{B+14}")
    poll("L_polly", nset2, 4, y_issue, lambda k: tagfold([YS(k) + 4*i + kk for i in range(4) for kk in (1, 3)], 9, 10), y_post, sleep=psleep)
    stamp(9)
    a("v_add_f32 v12, v12, v14")
    a("v_add_f32 v13, v13, v15")
    red16(12, 13)
    bf16r(a, 12)
    a("v_add_f32 v2, v2, v12")
    bf16r(a, 2)
    a(f"v_add_f32 v2, v2, v{FB}")
    a("v_cvt_pk_bf16_f32 v2, v2, v2")
    a("s_mov_b32 exec_lo, 0xf")
    a("s_mov_b32 exec_hi, 0xf")
    a(f"buffer_store_short v2, v7, s[{SOUT}:{SOUT+3}], 0 offen")
    a("s_cmp_eq_u32 s73, 0")
    a("s_cbranch_scc0 L_noepoch")
    a(f"s_sub_u32 s72, s{STAG}, {(TAGC - 1):#x}")
    a("v_mov_b32 v4, s72")
    a(f"v_mov_b32 v5, {WS_EPOCH}")
    a("s_mov_b64 exec, 1")
    a(f"buffer_store_dword v4, v5, s[{SWS}:{SWS+3}], 0 offen sc1")
    a("L_noepoch:")
    a("s_mov_b64 exec, -1")
    stamp(10)
    a("L_finish:")
    if ts:
        stamp(11)
        a("s_lshl_b32 s72, s2, 3")
        a("s_add_u32 s72, s72, s3")
        a("s_lshl_b32 s72, s72, 8")
        a(f"s_add_u32 s72, s72, {WS_TS}")
        a("v_lshlrev_b32 v1, 2, v0")
        a(f"buffer_store_dword v{VTS}, v1, s[{SWS}:{SWS+3}], s72 offen")
        if dbgts:
            a(f"s_cmp_lt_u32 s12, {NRED}")
            a("s_cbranch_scc0 L_end")
            a("s_cmp_eq_u32 s3, 7")
            a("s_cbranch_scc0 L_end")
            a("s_load_dwordx2 s[4:5], s[0:1], 80")
            a("s_waitcnt lgkmcnt(0)")
            a("s_mov_b32 s6, 256")
            a("s_mov_b32 s7, 0x20000")
            a(f"v_not_b32 v2, v{VTS}")
            a("s_mov_b64 exec, 0xffff")
            a(f"buffer_atomic_umax v{VTS}, v1, s[4:7], 0 offen")
            a("s_mov_b64 exec, 1")
            a(f"buffer_atomic_umax v2, v1, s[4:7], 0 offen offset:4")
    a("L_end:")
    a("s_endpgm")
    a(".p2align 6")
    a(".type role_tab,@object")
    a("role_tab:")
    for d0, d1 in role_table(pool, ea, ec, eg, par, 0 if fearly is None else round(pool / 7) - fearly):
        a(f".long {d0:#x}, {d1:#x}")
    a(".size role_tab, 2048")
    out = HEADER
    out += f"; @launch grid=(256,1,1) block=(512,1,1) lds={LDS_SIZE}\n"
    out += '.amdgcn_target "amdgcn-amd-amdhsa--gfx950"\n.text\n'
    out += a.text()
    k = Asm()
    k('.section .rodata,"a"')
    k(".p2align 6")
    k.kd(NAME, NV + 64, NV)
    out += k.text()
    return out

if __name__ == "__main__":
    cfg = json.loads(sys.argv[2]) if len(sys.argv) > 2 else {}
    open(sys.argv[1], "w").write(gen(**cfg))
```

```python
import sys, math, json
from asmlib import *
from gen_v3 import rowsum16, xchg, bf16r, perm_tile, HEADER, NAME, LOG2E, SCALE
import gen_v3
SX, SK, SV, SWQ, SWO, SWG, SWU, SWD, SOUT, SWS = 28, 32, 36, 40, 44, 48, 52, 56, 60, 64
WS_EPOCH = 0
WS_CNT  = 0x4000
WS_QP   = 0x10000
WS_GP   = 0x50000
WS_PART = 0xC0000
PART_STRIDE = 2176
WS_YP   = 0x150000
WS_TS   = 0x300000
WS_SIZE = 0x400000
TAGC = 0x9E3779B9
OOB = 0x40000000
L_RED2 = 0
L_QL  = 6144
L_CNT = 6656
L_Z   = 6720
L_RED = 7424
L_XNB = L_RED + 4096
L_O   = 7424
L_ML  = L_O + 8192
L_BLK = 16384
LDS_SIZE = L_BLK + 147456
assert gen_v3.L_XNB == L_XNB
STAG = 90
SPIN_MAX = 1 << 20
NATT, NCOMB, NRED = 64, 100, 72

def role_table(pool, ea, ec, eg, par, fcomp=0):
    tab = []
    for s in range(32):
        roles = []
        for p in range(8):
            comb = 255
            if p < 2: comb = 2 * s + p
            elif p == 2: comb = 64 + s
            elif p == 3 and s < 4: comb = 96 + s
            gu = 255
            if s >= 4:
                if p != 2: gu = 20 + 7 * (s - 4) + (p if p < 2 else p - 1)
            elif p == 1 or p >= 4: gu = 5 * s + (0 if p == 1 else p - 3)
            red = 255
            if p in (4, 5) or (p == 6 and s < 8): red = (p - 4) * 32 + s
            split = (p - s) & 7
            ex = (ea if comb < 64 else (ec - fcomp if comb < 100 else 0)) + (eg if gu != 255 else 0) + (par if split % 2 == 0 else -par)
            roles.append([comb, gu, red, ex])
        tot = 1024 - pool + sum(r[3] for r in roles)
        cnt = [tot // 8 - r[3] for r in roles]
        i = 7
        while sum(cnt) < 1024 - pool:
            cnt[i] += 1; i -= 1
        base = [sum(cnt[:k]) for k in range(8)]
        for split in range(8):
            p = (split + s) & 7
            tab.append((base[p] | (cnt[p] << 16), roles[p][0] | (roles[p][1] << 8) | (roles[p][2] << 16)))
    gus = sorted((t[1] >> 8) & 255 for t in tab if ((t[1] >> 8) & 255) != 255)
    assert gus == list(range(216)), gus
    assert sorted(t[1] & 255 for t in tab if (t[1] & 255) != 255) == list(range(100))
    assert sorted((t[1] >> 16) & 255 for t in tab if ((t[1] >> 16) & 255) != 255) == list(range(72))
    return tab

def gen(ts=0, th=4, pool=24, ea=4, ec=8, eg=4, par=1, rott=32, nset1=2, nset2=3, lightq=1, psleep=0, nopool=0, dbgts=0, early=0, latedma=0, nw=8, klin=0, wmask=None, w1=24, pmode=0, fearly=None, kord=0, m2=None, w0t=1):
    a = Asm()
    a.kernel_begin(NAME)
    VTS = 159
    def stamp(i):
        if not ts: return
        if ts >= 2 and i not in (0, 2, 4, 6, 11): return
        a("s_memrealtime s[100:101]")
        a("s_waitcnt lgkmcnt(0)")
        a(f"v_writelane_b32 v{VTS}, s100, {i}")
    def tagfold(regs, acc, tmp):
        regs = list(regs)
        a(f"v_xor_b32 v{acc}, s{STAG}, v{regs[0]}")
        rest = regs[1:]
        while rest:
            if len(rest) >= 2:
                a(f"v_xor_b32 v{tmp}, s{STAG}, v{rest[0]}")
                a(f"v_xor_b32 v{tmp+1}, s{STAG}, v{rest[1]}")
                a(f"v_or3_b32 v{acc}, v{acc}, v{tmp}, v{tmp+1}")
                rest = rest[2:]
            else:
                a(f"v_xor_b32 v{tmp}, s{STAG}, v{rest[0]}")
                a(f"v_or_b32 v{acc}, v{acc}, v{tmp}")
                rest = []
        a(f"v_cmp_ne_u32 s[92:93], 0, v{acc}")
    def poll(name, nsets, nloads, issue, check, post, sleep=0):
        a(f"s_mov_b32 s91, {SPIN_MAX}")
        for k in range(nsets): issue(k)
        a(f"{name}:")
        for k in range(nsets):
            a(f"s_waitcnt vmcnt({(nsets-1)*nloads})")
            check(k)
            a("s_nop 3")
            a("s_cmp_eq_u64 s[92:93], 0")
            a(f"s_cbranch_scc1 {name}_ok{k}")
            a("s_sub_u32 s91, s91, 1")
            a(f"s_cbranch_scc1 {name}_ok{k}")
            if sleep: a(f"s_sleep {sleep}")
            issue(k)
        a(f"s_branch {name}")
        for k in range(nsets):
            a(f"{name}_ok{k}:")
            post(k)
            if k < nsets - 1: a(f"s_branch {name}_done")
        a(f"{name}_done:")
    def selmasks(vc, vt):
        for k, sp in ((2, 4), (4, 6), (8, 8)):
            a(f"v_and_b32 v{vt}, {k}, v{vc}")
            a(f"v_cmp_ne_u32 s[{sp}:{sp+1}], 0, v{vt}")
    def seltree(DA, dst, dstep):
        for k in range(4):
            for r in range(4):
                a(f"v_cndmask_b32 v{DA+8*k+r}, v{DA+8*k+r}, v{DA+8*k+4+r}, s[4:5]")
        for k in range(2):
            for r in range(4):
                a(f"v_cndmask_b32 v{DA+16*k+r}, v{DA+16*k+r}, v{DA+16*k+8+r}, s[6:7]")
        for r in range(4):
            a(f"v_cndmask_b32 v{dst+dstep*r}, v{DA+r}, v{DA+16+r}, s[8:9]")
    VOK, VOV = 1, 2
    VM, VL, VAL, VT0 = 3, 4, 5, 6
    VS, VP, VPT, VQ, VACC, VV = 16, 24, 28, 36, 52, 84
    VCA, VONE, VG, VC = 148, 149, 150, 151
    VWA, VWM, VRA, VSA = 152, 153, 154, 155
    NV = 160
    AK = 0
    a("s_cmp_ge_u32 s2, 256")
    a("s_cbranch_scc1 L_end")
    a("s_load_dwordx16 s[4:19], s[0:1], 0")
    a("s_load_dwordx8 s[20:27], s[0:1], 64")
    a("s_getpc_b64 s[72:73]")
    a("L_pc:")
    a("s_add_u32 s72, s72, role_tab-L_pc")
    a("s_addc_u32 s73, s73, 0")
    a("s_lshl_b32 s74, s2, 3")
    a("s_load_dwordx2 s[68:69], s[72:73], s74")
    a("v_lshrrev_b32 v1, 6, v0")
    a("v_and_b32 v0, 63, v0")
    a("v_readfirstlane_b32 s3, v1")
    if ts: a(f"v_mov_b32 v{VTS}, 0")
    stamp(0)
    a("s_lshr_b32 s73, s2, 2")
    a("s_and_b32 s74, s2, 3")
    a("s_mul_i32 s75, s74, 144")
    a("s_mul_i32 s72, s3, 18")
    a("s_add_u32 s75, s75, s72")
    a("v_lshrrev_b32 v152, 3, v0")
    a("v_add_u32 v153, s75, v152")
    a("v_and_b32 v6, 7, v0")
    a("v_lshlrev_b32 v6, 4, v6")
    a("v_lshl_add_u32 v154, v153, 13, v6")
    a("v_cmp_gt_u32 vcc, 2, v152")
    a(f"v_mov_b32 v155, {OOB}")
    a("s_lshl_b32 s76, s73, 7")
    a("v_cndmask_b32 v155, v155, v154, vcc")
    a("s_add_u32 s77, s76, 65536")
    a("s_add_u32 s78, s76, 131072")
    a("v_lshrrev_b32 v156, 5, v0")
    a("v_mul_u32_u24 v156, 1152, v156")
    a("v_and_b32 v7, 31, v0")
    a("v_lshl_add_u32 v156, v7, 2, v156")
    a(f"v_lshrrev_b32 v{VG}, 4, v0")
    a(f"v_and_b32 v{VC}, 15, v0")
    a("v_and_b32 v6, 3, v0")
    a("v_lshlrev_b32 v6, 2, v6")
    a("v_bfe_u32 v7, v0, 2, 2")
    a("v_add_u32 v6, v6, v7")
    a("v_lshlrev_b32 v6, 8, v6")
    a(f"v_lshl_add_u32 v{VOK}, v{VG}, 4, v6")
    a(f"v_lshlrev_b32 v{VOV}, 4, v0")
    a("s_lshr_b32 s84, s2, 3")
    a("s_lshl_b32 s88, s84, 23")
    a(f"s_mul_i32 s85, s84, {rott}")
    a("s_waitcnt lgkmcnt(0)")
    a(f"s_load_dword s{STAG}, s[26:27], {WS_EPOCH}")
    a.srd(SX, 4, 2304)
    a.srd(SWQ, 10, 576 * 4096 * 2)
    VX, VF, VLT = 116, 126, 8
    VW = 36
    a("s_cmp_eq_u32 s3, 0")
    a("s_cbranch_scc0 L_nox")
    for i in range(9):
        a(f"buffer_load_dword v{VX+i}, v156, s[{SX}:{SX+3}], 0 offen offset:{128*i}")
    a("L_nox:")
    a(f"buffer_load_dwordx4 v[{VW}:{VW+3}], v154, s[{SWQ}:{SWQ+3}], s76 offen nt")
    a(f"buffer_load_dwordx4 v[{VW+4}:{VW+7}], v154, s[{SWQ}:{SWQ+3}], s77 offen nt")
    a(f"buffer_load_dwordx4 v[{VW+8}:{VW+11}], v155, s[{SWQ}:{SWQ+3}], s78 offen nt")
    a.srd(SK, 6, 1 << 28)
    a("s_and_b32 s89, s68, 0xffff")
    a("s_lshr_b32 s80, s68, 16")
    def tile_off(buf):
        su, so = 98 + buf, 94 + 2 * buf
        a(f"s_add_u32 s72, s{su}, s85")
        a("s_and_b32 s72, s72, 1023")
        a("s_lshl_b32 s72, s72, 13")
        a("s_add_u32 s72, s72, s88")
        a(f"s_cmp_lt_u32 s{su}, 1024")
        a(f"s_cselect_b32 s{so}, s72, {OOB}")
        a(f"s_add_u32 s{so+1}, s{so}, 4096")
    def kloads(buf):
        order = {0: [(t, s) for t in range(2) for s in range(4)],
                 1: [(t, s) for t in range(2) for s in (0, 2, 1, 3)],
                 2: [(0, 0), (0, 2), (1, 0), (1, 2), (0, 1), (0, 3), (1, 1), (1, 3)]}[kord]
        for t, s in order:
            if True:
                r = AK + 32 * buf + 16 * t + 4 * s
                if klin:
                    a(f"buffer_load_dwordx4 a[{r}:{r+3}], v{VOV}, s[{SK}:{SK+3}], s{94+2*buf+t} offen offset:{1024*s} nt")
                else:
                    a(f"buffer_load_dwordx4 a[{r}:{r+3}], v{VOK}, s[{SK}:{SK+3}], s{94+2*buf+t} offen offset:{64*s} nt")
    def vloads(buf):
        for i in range(8):
            r = VV + 32 * buf + 4 * i
            a(f"buffer_load_dwordx4 v[{r}:{r+3}], v{VOV}, s[{SV}:{SV+3}], s{94+2*buf+i//4} offen offset:{1024*(i%4)} nt")
    a("s_add_u32 s98, s89, s3")
    a("s_sub_u32 s98, s98, 1")
    a("s_add_u32 s99, s98, 7")
    if m2 is not None:
        a(f"s_cmp_le_u32 s3, {m2}")
        a("s_cselect_b32 s99, s99, 1024")
    a("s_cmp_eq_u32 s3, 0")
    a("s_cbranch_scc1 L_nok0")
    tile_off(0)
    kloads(0)
    if early:
        a.srd(SV, 8, 1 << 28)
        vloads(0)
    if early >= 2:
        tile_off(1)
        kloads(1)
    a("L_nok0:")
    a.srd(SV, 8, 1 << 28)
    a.srd(SWG, 16, 576 * 4608 * 2)
    a.srd(SWU, 18, 576 * 4608 * 2)
    a.srd(SWO, 12, 4096 * 576 * 2)
    a.srd(SWD, 20, 4608 * 576 * 2)
    a.srd(SOUT, 22, 2304)
    a.srd(SWS, 26, WS_SIZE)
    a("s_lshl_b32 s72, s84, 8")
    a(f"s_add_u32 s72, s72, {WS_CNT}")
    a("s_add_u32 s70, s26, s72")
    a("s_addc_u32 s71, s27, 0")
    a("s_and_b32 s68, s69, 255")
    a("s_bfe_u32 s12, s69, 0x80010")
    a("s_bfe_u32 s69, s69, 0x80008")
    a("s_mov_b32 s18, 0")
    a("s_mov_b32 s19, 0x10000")
    if nopool:
        lo = NATT if nopool == 1 else 0
        a(f"s_sub_u32 s72, s68, {lo}")
        a(f"s_cmp_lt_u32 s72, {NCOMB - lo}")
        a("s_cselect_b32 s19, 0, s19")
    a("s_mov_b32 s82, 0x05040100")
    a("s_mov_b32 s83, 0x07060302")
    a(f"s_mov_b32 s86, {f32(SCALE)}")
    a(f"s_mov_b32 s87, {f32(LOG2E)}")
    a(f"v_mov_b32 v{VCA}, {L_CNT}")
    a(f"v_mov_b32 v{VONE}, 1")
    def dma_block(throttle):
        l1, l2 = a.label("L_dma_wd"), a.label("L_nodma")
        a(f"s_cmp_lt_u32 s68, {NCOMB}")
        a(f"s_cbranch_scc0 {l2}")
        a(f"s_cmp_lt_u32 s68, {NATT}")
        a(f"s_cbranch_scc0 {l1}")
        if latedma: a(f"s_branch {l2}")
        for which in ((1,) if latedma else (0, 1)):
            srd = SWO if which == 0 else SWD
            n = 9 if which == 0 else 18
            if which == 1:
                a(f"{l1}:")
                a(f"s_sub_u32 s91, s68, {NATT}")
                a("s_mul_i32 s91, s91, 147456")
            else:
                a("s_mul_i32 s91, s68, 73728")
            a(f"s_mul_i32 s72, s3, {1024*n}")
            a("s_add_u32 s91, s91, s72")
            for i in range(n):
                if i % 4 == 0:
                    if throttle is not None and i % 8 == 0: a(f"s_waitcnt vmcnt({throttle})")
                    a(f"s_add_u32 m0, s72, {L_BLK + 1024*i}")
                    a(f"s_add_u32 s78, s91, {1024*i}")
                a(f"buffer_load_dwordx4 v{VOV}, s[{srd}:{srd+3}], s78 offen offset:{1024*(i%4)} nt lds")
            if which == 0:
                a(f"s_branch {l2}")
        a(f"{l2}:")
    a("s_cmp_eq_u32 s3, 0")
    a("s_cbranch_scc0 L_A0")
    a("s_and_b32 s72, s2, 15")
    a("s_cmp_lt_u32 s72, 2")
    a("s_cbranch_scc0 L_noinit")
    a("s_lshl_b32 s72, s72, 4")
    a("s_lshr_b32 s91, s2, 4")
    a("s_add_u32 s72, s72, s91")
    a("s_lshl_b32 s72, s72, 8")
    a(f"s_add_u32 s72, s72, {WS_CNT}")
    a(f"v_mov_b32 v6, {1024-pool}")
    a("v_mov_b32 v7, 0")
    a("s_mov_b64 exec, 1")
    a(f"buffer_store_dword v6, v7, s[{SWS}:{SWS+3}], s72 offen sc1")
    a("s_mov_b64 exec, -1")
    a("L_noinit:")
    a("s_waitcnt vmcnt(3)")
    stamp(1)
    gen_v3.ln_compute(a, VX, VF, VLT)
    n0 = 7 + (7 if m2 is None else m2)
    a(f"v_mov_b32 v6, {n0 + (2 if w0t else 0)}")
    a("v_mov_b32 v7, 0")
    a(f"ds_write_b64 v{VCA}, v[6:7]")
    a("s_waitcnt vmcnt(0) lgkmcnt(0)")
    a("L_A0:")
    a("v_add_u32 v6, 8, v153")
    a("v_add_u32 v7, 16, v153")
    a("v_min_u32 v7, 575, v7")
    a("v_lshlrev_b32 v153, 1, v153")
    a("v_lshlrev_b32 v6, 1, v6")
    a("v_lshlrev_b32 v7, 1, v7")
    a("s_barrier")
    XR = 8
    for i, r in enumerate((153, 6, 7)):
        a(f"ds_read_u16 v{XR+2*i}, v{r} offset:{L_XNB}")
        a(f"ds_read_u16 v{XR+2*i+1}, v{r} offset:{L_XNB+1152}")
    a("s_waitcnt lgkmcnt(0)")
    a(f"s_add_u32 s{STAG}, s{STAG}, {TAGC:#x}")
    for i in range(6):
        a(f"v_lshlrev_b32 v{XR+i}, 16, v{XR+i}")
    a(f"s_waitcnt vmcnt({8 + 8*early})")
    QA = 16
    for i in range(3):
        for w in range(4):
            a(f"v_lshlrev_b32 v14, 16, v{VW+4*i+w}")
            a(f"v_and_b32 v15, 0xffff0000, v{VW+4*i+w}")
            op = "v_mul_f32" if i == 0 else "v_fmac_f32"
            a(f"{op} v{QA+2*w}, v14, v{XR+2*i}")
            a(f"{op} v{QA+2*w+1}, v15, v{XR+2*i}")
            a(f"{op} v{QA+8+2*w}, v14, v{XR+2*i+1}")
            a(f"{op} v{QA+8+2*w+1}, v15, v{XR+2*i+1}")
    a("s_nop 1")
    for k in range(8):
        a(f"v_permlane32_swap_b32 v{QA+k}, v{QA+8+k}")
    a("s_nop 1")
    for k in range(8):
        a(f"v_add_f32 v{QA+k}, v{QA+k}, v{QA+8+k}")
    a("s_nop 1")
    for k in range(4):
        a(f"v_permlane16_swap_b32 v{QA+k}, v{QA+4+k}")
    a("s_nop 1")
    for k in range(4):
        a(f"v_add_f32 v{QA+k}, v{QA+k}, v{QA+4+k}")
    a("s_nop 1")
    for k in range(4):
        a(f"v_add_f32_dpp v{QA+k}, v{QA+k}, v{QA+k} row_ror:8 row_mask:0xf bank_mask:0xf")
    a("v_lshrrev_b32 v6, 5, v0")
    a("v_lshlrev_b32 v6, 8, v6")
    a("v_and_b32 v7, 7, v0")
    a("v_lshl_add_u32 v6, v7, 5, v6")
    a("v_bfe_u32 v7, v0, 4, 1")
    a("v_lshl_add_u32 v6, v7, 4, v6")
    a("s_lshl_b32 s72, s3, 9")
    a("v_add_u32 v6, s72, v6")
    a(f"ds_write_b128 v6, v[{QA}:{QA+3}] offset:{L_RED}")
    a("s_waitcnt lgkmcnt(0)")
    a("s_barrier")
    stamp(2)
    a("s_cmp_eq_u32 s3, 0")
    a("s_cbranch_scc0 L_prefetch")
    a("v_lshlrev_b32 v6, 3, v0")
    for w in range(8):
        a(f"ds_read_b64 v[{16+2*w}:{17+2*w}], v6 offset:{L_RED + 512*w}")
    a("v_lshrrev_b32 v6, 5, v0")
    a("v_lshlrev_b32 v6, 15, v6")
    a("v_and_b32 v7, 31, v0")
    a("v_lshl_add_u32 v6, v7, 4, v6")
    a("s_lshl_b32 s72, s74, 16")
    a("s_lshl_b32 s91, s73, 9")
    a("s_add_u32 s72, s72, s91")
    a(f"s_add_u32 s72, s72, {WS_QP}")
    a(f"v_mov_b32 v9, s{STAG}")
    a(f"v_mov_b32 v11, s{STAG}")
    a("s_waitcnt lgkmcnt(0)")
    a("v_add_f32 v8, v16, v18")
    a("v_add_f32 v10, v17, v19")
    for w in range(2, 8):
        a(f"v_add_f32 v8, v8, v{16+2*w}")
        a(f"v_add_f32 v10, v10, v{17+2*w}")
    a(f"buffer_store_dwordx4 v[8:11], v6, s[{SWS}:{SWS+3}], s72 offen sc1")
    stamp(3)
    a("s_lshr_b32 s72, s84, 4")
    a("s_lshl_b32 s72, s72, 15")
    a("s_and_b32 s91, s84, 15")
    a("s_lshl_b32 s91, s91, 11")
    a("s_add_u32 s72, s72, s91")
    a(f"s_add_u32 s76, s72, {WS_QP}")
    for rb in range(1, 4):
        a(f"s_add_u32 s{76+rb}, s76, {65536*rb}")
    if lightq:
        a("v_and_b32 v6, 3, v0")
        a("v_lshlrev_b32 v6, 16, v6")
        a("v_bfe_u32 v7, v0, 2, 2")
        a("v_lshl_add_u32 v6, v7, 9, v6")
        poll("L_pollq0", 1, 1,
             lambda k: a(f"buffer_load_dwordx2 v[12:13], v6, s[{SWS}:{SWS+3}], s76 offen sc1"),
             lambda k: a(f"v_cmp_ne_u32 s[92:93], s{STAG}, v13"),
             lambda k: None, sleep=4)
    PB = 16
    def q_issue(k):
        for rb in range(4):
            for h in range(2):
                r = PB + 8 * rb + 4 * h
                a(f"buffer_load_dwordx4 v[{r}:{r+3}], v{VOV}, s[{SWS}:{SWS+3}], s{76+rb} offen offset:{1024*h} sc1")
    poll("L_pollq", 1, 8, q_issue, lambda k: tagfold([PB + 4*i + kk for i in range(8) for kk in (1, 3)], 9, 10), lambda k: None, sleep=4)
    for h in range(2):
        for k in (0, 2):
            r = PB + 4 * h + k
            a(f"v_add_f32 v{r}, v{r}, v{r+8}")
            a(f"v_add_f32 v{r+16}, v{r+16}, v{r+24}")
            a(f"v_add_f32 v{r}, v{r}, v{r+16}")
        a(f"v_cvt_pk_bf16_f32 v{8+h}, v{PB+4*h}, v{PB+4*h+2}")
    a("v_lshlrev_b32 v6, 2, v0")
    a(f"ds_write_b32 v6, v8 offset:{L_QL}")
    a(f"ds_write_b32 v6, v9 offset:{L_QL+256}")
    a("s_waitcnt lgkmcnt(0)")
    stamp(12)
    a("s_branch L_B")
    a("L_prefetch:")
    a("s_mul_i32 s74, s69, 171")
    a("s_lshr_b32 s74, s74, 9")
    a("s_mul_i32 s72, s74, 3")
    a("s_sub_u32 s75, s69, s72")
    a("s_cmp_lt_u32 s69, 216")
    a("s_cselect_b32 s79, 1, 0")
    a("s_cmp_lt_u32 s3, 7")
    a("s_cselect_b32 s79, s79, 0")
    a("s_cmp_eq_u32 s79, 0")
    a("s_cbranch_scc1 L_nogu1")
    a("s_mul_i32 s76, s75, 192")
    a("s_lshl_b32 s72, s3, 5")
    a("s_add_u32 s76, s76, s72")
    a("s_sub_u32 s76, s76, 32")
    a(f"v_lshl_add_u32 v6, v{VG}, 3, s76")
    a("v_mul_u32_u24 v7, 9216, v6")
    a(f"v_lshl_add_u32 v7, v{VC}, 4, v7")
    a("s_lshr_b32 s77, s74, 1")
    a("s_lshl_b32 s77, s77, 8")
    a("v_and_b32 v8, 1, v0")
    a("v_mul_u32_u24 v8, 1152, v8")
    a("v_lshl_add_u32 v8, v6, 1, v8")
    a(f"ds_read_b128 v[12:15], v8 offset:{L_XNB}")
    a(f"s_waitcnt vmcnt({th})")
    a("s_bitcmp1_b32 s74, 0")
    a("s_cbranch_scc1 L_gu_up")
    for which, srd in ((0, SWG), (1, SWU)):
        if which: a("L_gu_up:")
        for i in range(8):
            a(f"buffer_load_dwordx4 v[{VACC+4*i}:{VACC+4*i+3}], v7, s[{srd}:{srd+3}], s77 offen nt")
            if i < 7: a("s_add_u32 s77, s77, 9216")
        if not which: a("s_branch L_nogu1")
    a("L_nogu1:")
    a(f"s_waitcnt vmcnt({th})")
    if early == 0:
        vloads(0)
    elif early == 1:
        tile_off(1)
        kloads(1)
    else:
        vloads(1)
    a("s_cmp_eq_u32 s79, 0")
    a("s_cbranch_scc1 L_nogu2")
    selmasks(VC, 6)
    a("s_waitcnt vmcnt(8) lgkmcnt(0)")
    DA = 16
    for j in range(8):
        tb = 8 if (j & 1) else 48
        perm_tile(a, VACC, tb, j)
        a("s_nop 1")
        a(f"v_mfma_f32_16x16x32_bf16 {vr(DA+4*j,4)}, {vr(tb,4)}, v[12:15], 0")
    a("s_lshl_b32 s72, s3, 10")
    a("s_sub_u32 s72, s72, 1024")
    a(f"v_add_u32 v6, s72, v{VOV}")
    a("s_nop 7")
    seltree(DA, 8, 1)
    a(f"ds_write_b128 v6, v[8:11] offset:{L_RED2}")
    a("L_nogu2:")
    if early == 0:
        a(f"s_waitcnt vmcnt({th})")
        tile_off(1)
        kloads(1)
    if early <= 1:
        a(f"s_waitcnt vmcnt({th})")
        vloads(1)
    dma_block(th)
    a("s_waitcnt lgkmcnt(0)")
    stamp(3)
    a("L_B:")
    a("s_barrier")
    stamp(4)
    a("v_and_b32 v6, 1, v0")
    a("v_lshlrev_b32 v6, 8, v6")
    a(f"v_lshl_add_u32 v6, v{VG}, 4, v6")
    for s in range(4):
        a(f"ds_read_b128 v[{VQ+4*s}:{VQ+4*s+3}], v6 offset:{L_QL + 64*s}")
    a("s_cmp_eq_u32 s3, 0")
    a("s_cbranch_scc0 L_w0_done")
    if w0t:
        a(f"s_add_u32 s98, s89, {n0}")
        a(f"s_add_u32 s99, s89, {n0+1}")
    else:
        a("s_mov_b32 s98, 1024")
        a("s_mov_b32 s99, 1024")
    tile_off(0)
    kloads(0)
    vloads(0)
    tile_off(1)
    kloads(1)
    vloads(1)
    dma_block(None)
    a("L_w0_done:")
    a("s_cmp_eq_u32 s3, 7")
    a("s_cbranch_scc0 L_nogu3")
    a("s_cmp_lt_u32 s69, 216")
    a("s_cbranch_scc0 L_nogu3")
    for w in range(6):
        a(f"ds_read_b128 v[{VACC+4*w}:{VACC+4*w+3}], v{VOV} offset:{L_RED2 + 1024*w}")
    a(f"v_lshlrev_b32 v6, 9, v{VG}")
    a(f"v_lshl_add_u32 v6, v{VC}, 3, v6")
    a("s_lshl_b32 s72, s69, 11")
    a(f"s_add_u32 s72, s72, {WS_GP}")
    a("s_waitcnt lgkmcnt(0)")
    for w in range(1, 6):
        for r in range(4):
            a(f"v_add_f32 v{VACC+r}, v{VACC+r}, v{VACC+4*w+r}")
    for r in range(4):
        a(f"v_mov_b32 v{8+2*r}, v{VACC+r}")
        a(f"v_mov_b32 v{9+2*r}, s{STAG}")
    for r in range(4):
        a(f"buffer_store_dwordx2 v[{8+2*r}:{9+2*r}], v6, s[{SWS}:{SWS+3}], s72 offen offset:{128*r} sc1")
    a("L_nogu3:")
    if nw < 8 or wmask is not None:
        mk = wmask if wmask is not None else (1 << nw) - 1
        a(f"s_movk_i32 s72, {mk}")
        a("s_bitcmp0_b32 s72, s3")
        a("s_cselect_b32 s80, 0, s80")
        a("s_cselect_b32 s19, 0, s19")
        a("s_cselect_b32 s72, 0, 1")
        a(f"v_mov_b32 v{VONE}, s72")
    a(f"v_lshl_add_u32 v{VWA}, v{VC}, 2, v{VG}")
    a(f"v_lshlrev_b32 v{VWA}, 7, v{VWA}")
    a("s_lshl_b32 s72, s3, 10")
    a(f"v_add_u32 v{VWA}, s72, v{VWA}")
    a("s_lshl_b32 s72, s3, 4")
    a(f"v_lshl_add_u32 v{VWM}, v{VC}, 3, s72")
    a("s_and_b32 s72, s3, 1")
    a("s_lshl_b32 s72, s72, 6")
    a("v_add_u32 v6, s72, v0")
    a("v_lshrrev_b32 v7, 5, v6")
    a("v_bfe_u32 v16, v6, 3, 2")
    a("v_and_b32 v17, 7, v6")
    a("v_lshlrev_b32 v7, 5, v7")
    a("v_lshl_add_u32 v7, v17, 2, v7")
    a("v_add_u32 v7, v7, v16")
    a("s_bfe_u32 s13, s3, 0x10001")
    a("s_lshl_b32 s72, s13, 9")
    a(f"v_lshl_add_u32 v{VRA}, v7, 2, s72")
    a("s_lshl_b32 s72, s13, 10")
    a(f"v_lshl_add_u32 v{VSA}, v6, 3, s72")
    a(f"s_mul_i32 s81, s2, {PART_STRIDE}")
    a(f"s_add_u32 s81, s81, {WS_PART}")
    for i in range(32):
        a(f"v_mov_b32 v{VACC+i}, 0")
    a(f"v_mov_b32 v{VM}, 0xf149f2ca")
    a(f"v_mov_b32 v{VL}, 0")
    a("s_waitcnt lgkmcnt(0)")
    a("L_loop:")
    for buf in range(2):
        a(f"s_cmp_ge_u32 s{98+buf}, 1024")
        a("s_cbranch_scc1 L_loop_done")
        lt = a.label("L_have")
        if pmode:
            lp, lq, lx = a.label("L_pool"), a.label("L_grabbed"), a.label("L_chk")
            a("s_cmp_lg_u32 s18, 0")
            a(f"s_cbranch_scc1 {lp}")
        a("s_mov_b64 exec, 1")
        a(f"ds_add_rtn_u32 v15, v{VCA}, v{VONE}")
        a("s_mov_b64 exec, -1")
        if pmode:
            a(f"s_branch {lq}")
            a(f"{lp}:")
            a(f"s_mov_b32 s{98+buf}, 1")
            a(f"s_atomic_add s{98+buf}, s[70:71], 0 glc")
            a(f"{lq}:")
        a(f"s_waitcnt vmcnt({w1})")
        for s in range(4):
            for t in range(2):
                r = AK + 32 * buf + 16 * t + 4 * s
                c = "0" if s == 0 else vr(VS + 4 * t, 4)
                a(f"v_mfma_f32_16x16x32_bf16 {vr(VS+4*t,4)}, a[{r}:{r+3}], {vr(VQ+4*s,4)}, {c}")
        a("s_waitcnt lgkmcnt(0)")
        if pmode:
            a("s_cmp_lg_u32 s18, 0")
            a(f"s_cbranch_scc1 {lx}")
        a("v_readfirstlane_b32 s72, v15")
        a("s_nop 3")
        if ts == 3:
            lz = a.label("L_nost")
            a("s_and_b32 s91, s72, 15")
            a("s_cmp_eq_u32 s91, 0")
            a(f"s_cbranch_scc0 {lz}")
            a("s_lshr_b32 s91, s72, 4")
            a("s_and_b32 s91, s91, 15")
            a("s_add_u32 s91, s91, 16")
            a("s_memrealtime s[100:101]")
            a("s_waitcnt lgkmcnt(0)")
            a("s_mov_b32 m0, s91")
            a("s_nop 3")
            a(f"v_writelane_b32 v{VTS}, s100, m0")
            a(f"{lz}:")
        a(f"s_add_u32 s{98+buf}, s72, s89")
        a("s_cmp_lt_u32 s72, s80")
        a(f"s_cbranch_scc1 {lt}")
        a(f"s_mov_b32 s{98+buf}, 1024")
        if pool:
            a("s_cmp_ge_u32 s72, s19")
            a(f"s_cbranch_scc1 {lt}")
            a(f"s_mov_b32 s{98+buf}, 1")
            a(f"s_atomic_add s{98+buf}, s[70:71], 0 glc")
            if pmode: a("s_mov_b32 s18, 1")
            a("s_waitcnt lgkmcnt(0)")
            if pmode: a(f"{lx}:")
            a(f"s_cmp_lt_u32 s{98+buf}, 1024")
            a(f"s_cbranch_scc1 {lt}")
            if pmode: a("s_mov_b32 s18, 0")
            a("v_mov_b32 v15, 0x10000")
            a("s_mov_b64 exec, 1")
            a(f"ds_add_u32 v{VCA}, v15")
            a("s_mov_b64 exec, -1")
        a(f"{lt}:")
        tile_off(buf)
        kloads(buf)
        T = VT0
        for x in range(4):
            a(f"v_cvt_pk_bf16_f32 v{T+x}, v{VS+2*x}, v{VS+2*x+1}")
        for x in range(4):
            a(f"v_lshlrev_b32 v{VS+2*x}, 16, v{T+x}")
            a(f"v_and_b32 v{VS+2*x+1}, 0xffff0000, v{T+x}")
        for x in range(8):
            a(f"v_mul_f32 v{VS+x}, s86, v{VS+x}")
        for x in range(4):
            a(f"v_cvt_pk_bf16_f32 v{T+x}, v{VS+2*x}, v{VS+2*x+1}")
        for x in range(4):
            a(f"v_lshlrev_b32 v{VS+2*x}, 16, v{T+x}")
            a(f"v_and_b32 v{VS+2*x+1}, 0xffff0000, v{T+x}")
        a(f"v_max3_f32 v{T}, v{VS}, v{VS+1}, v{VS+2}")
        a(f"v_max3_f32 v{T+1}, v{VS+3}, v{VS+4}, v{VS+5}")
        a(f"v_max3_f32 v{T}, v{T}, v{VS+6}, v{VS+7}")
        a(f"v_max3_f32 v{T}, v{T}, v{T+1}, v{VM}")
        xchg(a, T, T + 1, 16, "max")
        xchg(a, T, T + 1, 32, "max")
        a(f"v_sub_f32 v{VAL}, v{VM}, v{T}")
        a(f"v_mul_f32 v{VAL}, s87, v{VAL}")
        a(f"v_exp_f32 v{VAL}, v{VAL}")
        a(f"v_mov_b32 v{VM}, v{T}")
        a(f"v_mul_f32 v{T+1}, s87, v{T}")
        for x in range(8):
            a(f"v_fma_f32 v{VS+x}, v{VS+x}, s87, -v{T+1}")
        for x in range(8):
            a(f"v_exp_f32 v{VS+x}, v{VS+x}")
        a(f"v_cmp_neq_f32 vcc, 1.0, v{VAL}")
        a(f"v_mul_f32 v{VL}, v{VL}, v{VAL}")
        for x in range(4):
            a(f"v_cvt_pk_bf16_f32 v{VP+x}, v{VS+2*x}, v{VS+2*x+1}")
        a(f"v_add_f32 v{T}, v{VS}, v{VS+1}")
        a(f"v_add_f32 v{T+1}, v{VS+2}, v{VS+3}")
        a(f"v_add_f32 v{T+2}, v{VS+4}, v{VS+5}")
        a(f"v_add_f32 v{T+3}, v{VS+6}, v{VS+7}")
        a(f"v_add_f32 v{T}, v{T}, v{T+1}")
        a(f"v_add_f32 v{T+2}, v{T+2}, v{T+3}")
        a(f"v_add_f32 v{T}, v{T}, v{T+2}")
        a(f"v_add_f32 v{VL}, v{VL}, v{T}")
        lab = a.label("L_noscale")
        a(f"s_cbranch_vccz {lab}")
        for i in range(32):
            a(f"v_mul_f32 v{VACC+i}, v{VACC+i}, v{VAL}")
        a(f"{lab}:")
        a("s_waitcnt vmcnt(24)")
        for j in range(8):
            tb = VPT + 4 * (j & 1)
            perm_tile(a, VV + 32 * buf, tb, j)
            a("s_nop 1")
            a(f"v_mfma_f32_16x16x32_bf16 {vr(VACC+4*j,4)}, {vr(tb,4)}, {vr(VP,4)}, {vr(VACC+4*j,4)}")
        vloads(buf)
    a("s_branch L_loop")
    a("L_loop_done:")
    stamp(5)
    a("s_mov_b32 exec_lo, 0x00030003")
    a("s_mov_b32 exec_hi, 0x00030003")
    for j in range(8):
        a(f"ds_write_b128 v{VWA}, {vr(VACC+4*j,4)} offset:{L_O+16*j}")
    a("s_mov_b64 exec, -1")
    xchg(a, VL, VT0, 16)
    xchg(a, VL, VT0, 32)
    a(f"v_mov_b32 v10, v{VM}")
    a(f"v_mov_b32 v11, v{VL}")
    a("s_mov_b64 exec, 3")
    a(f"ds_write_b64 v{VWM}, v[10:11] offset:{L_ML}")
    a("s_mov_b64 exec, -1")
    a("s_lshl_b32 s72, s13, 3")
    a("v_mov_b32 v8, s72")
    a("s_lshl_b32 s72, s13, 4")
    a("v_mov_b32 v7, s72")
    a(f"v_mov_b32 v13, s{STAG}")
    a(f"v_mov_b32 v41, s{STAG}")
    a(f"v_mov_b32 v43, s{STAG}")
    if latedma:
        a(f"s_cmp_lt_u32 s68, {NATT}")
        a("s_cbranch_scc0 L_ld_done")
        a("s_mul_i32 s91, s68, 73728")
        a("L_ld_loop:")
        a("s_mov_b64 exec, 1")
        a(f"ds_add_rtn_u32 v15, v{VCA}, v{VONE} offset:4")
        a("s_mov_b64 exec, -1")
        a("s_waitcnt lgkmcnt(0)")
        a("v_readfirstlane_b32 s72, v15")
        a("s_nop 3")
        a(f"s_cmp_lt_u32 s72, {72 // latedma}")
        a("s_cbranch_scc0 L_ld_done")
        a(f"s_mul_i32 s72, s72, {1024*latedma}")
        a("s_add_u32 s79, s91, s72")
        for i in range(latedma):
            if i % 4 == 0:
                a(f"s_add_u32 m0, s72, {L_BLK + 1024*i}")
                a(f"s_add_u32 s78, s79, {1024*i}")
            a(f"buffer_load_dwordx4 v{VOV}, s[{SWO}:{SWO+3}], s78 offen offset:{1024*(i%4)} nt lds")
        a(f"s_waitcnt vmcnt({latedma})")
        a("s_branch L_ld_loop")
        a("L_ld_done:")
        a("s_waitcnt lgkmcnt(0)")
    else:
        a("s_waitcnt vmcnt(0) lgkmcnt(0)")
    a("s_barrier")
    stamp(6)
    a("s_cmp_lt_u32 s3, 4")
    a("s_cbranch_scc0 L_nopub")
    for w in range(8):
        a(f"ds_read_b64 v[{24+2*w}:{25+2*w}], v8 offset:{L_ML+16*w}")
    for w in range(8):
        a(f"ds_read_b32 v{16+w}, v{VRA} offset:{L_O+1024*w}")
    a("s_waitcnt lgkmcnt(8)")
    a("v_max3_f32 v40, v24, v26, v28")
    a("v_max3_f32 v9, v30, v32, v34")
    a("v_max3_f32 v40, v40, v36, v38")
    a("v_max_f32 v40, v40, v9")
    a("v_mul_f32 v9, s87, v40")
    for w in range(8):
        a(f"v_fma_f32 v{24+2*w}, v{24+2*w}, s87, -v9")
    for w in range(8):
        a(f"v_exp_f32 v{24+2*w}, v{24+2*w}")
    a("s_waitcnt lgkmcnt(0)")
    a("v_mul_f32 v12, v16, v24")
    a("v_mul_f32 v14, v17, v26")
    for w in range(2, 8, 2):
        a(f"v_fmac_f32 v12, v{16+w}, v{24+2*w}")
        a(f"v_fmac_f32 v14, v{17+w}, v{26+2*w}")
    a("v_add_f32 v12, v12, v14")
    a(f"buffer_store_dwordx2 v[12:13], v{VSA}, s[{SWS}:{SWS+3}], s81 offen sc1")
    a("v_mul_f32 v42, v25, v24")
    for w in range(1, 8):
        a(f"v_fmac_f32 v42, v{25+2*w}, v{24+2*w}")
    a("s_mov_b64 exec, 1")
    a(f"buffer_store_dwordx4 v[40:43], v7, s[{SWS}:{SWS+3}], s81 offen offset:2048 sc1")
    a("s_mov_b64 exec, -1")
    if latedma:
        a("s_waitcnt vmcnt(2)")
        a("s_branch L_pubdone")
    a("L_nopub:")
    if latedma:
        a("s_waitcnt vmcnt(0)")
        a("L_pubdone:")
    stamp(7)
    a(f"s_cmp_lt_u32 s68, {NCOMB}")
    a("s_cbranch_scc0 L_notcomb")
    if latedma:
        a("s_barrier")
    a("s_cmp_eq_u32 s3, 7")
    a("s_cbranch_scc1 L_finish")
    a("s_and_b32 s72, s3, 6")
    a("s_cmp_eq_u32 s72, 4")
    a("s_cbranch_scc1 L_gather")
    a("s_min_u32 s73, s3, 4")
    a(f"v_mul_u32_u24 v46, 9216, v{VG}")
    a("s_lshl_b32 s72, s73, 4")
    a(f"v_add_u32 v47, s72, v{VC}")
    a("v_min_u32 v47, 71, v47")
    a("v_lshl_add_u32 v46, v47, 4, v46")
    a(f"v_add_u32 v46, {L_BLK}, v46")
    TMP = 48
    def prep(ks):
        for i in range(8):
            a(f"ds_read_b128 v[{TMP+4*i}:{TMP+4*i+3}], v46 offset:{1152*i}")
        a("v_add_u32 v46, 36864, v46")
        a("s_waitcnt lgkmcnt(0)")
        for j in range(8):
            if ks < 2:
                perm_tile(a, TMP, VV + 32 * ks + 4 * j, j)
            else:
                perm_tile(a, TMP, 8, j)
                for x in range(4):
                    a(f"v_accvgpr_write_b32 a{32*(ks-2)+4*j+x}, v{8+x}")
    prep(0); prep(1)
    a(f"s_cmp_lt_u32 s68, {NATT}")
    a("s_cbranch_scc1 L_prep_done")
    prep(2); prep(3)
    a("L_prep_done:")
    selmasks(VC, 8)
    a("s_lshl_b32 s72, s73, 7")
    a(f"v_lshl_add_u32 v46, v{VG}, 5, s72")
    a("v_mov_b32 v8, 576")
    a("v_cmp_lt_u32 s[10:11], v46, v8")
    a("v_lshlrev_b32 v46, 4, v46")
    a(f"v_lshl_add_u32 v46, v{VC}, 3, v46")
    a("s_mul_i32 s72, s68, 9216")
    a(f"s_add_u32 s72, s72, {WS_YP}")
    a("v_and_b32 v47, 1, v0")
    a("v_lshlrev_b32 v47, 8, v47")
    a(f"v_lshl_add_u32 v47, v{VG}, 4, v47")
    for r in range(4):
        a(f"v_mov_b32 v{25+2*r}, s{STAG}")
    a("s_barrier")
    stamp(9)
    for ks in range(4):
        a(f"ds_read_b128 v[{8+4*ks}:{11+4*ks}], v47 offset:{L_Z + 64*ks}")
    DA = 48
    def mm(ks):
        a(f"s_waitcnt lgkmcnt({3-ks})")
        for j in range(8):
            A = f"a[{32*(ks-2)+4*j}:{32*(ks-2)+4*j+3}]" if ks >= 2 else vr(VV + 32*ks + 4*j, 4)
            c = "0" if ks == 0 else vr(DA + 4*j, 4)
            a(f"v_mfma_f32_16x16x32_bf16 {vr(DA+4*j,4)}, {A}, v[{8+4*ks}:{11+4*ks}], {c}")
    mm(0); mm(1)
    a(f"s_cmp_lt_u32 s68, {NATT}")
    a("s_cbranch_scc1 L_mm_done")
    mm(2); mm(3)
    a("L_mm_done:")
    a("s_nop 6")
    seltree(DA, 24, 2)
    a("s_mov_b64 exec, s[10:11]")
    for r in range(4):
        a(f"buffer_store_dwordx2 v[{24+2*r}:{25+2*r}], v46, s[{SWS}:{SWS+3}], s72 offen offset:{128*r} sc1")
    a("s_mov_b64 exec, -1")
    stamp(10)
    a("s_branch L_finish")
    a("L_gather:")
    a("s_sub_u32 s73, s3, 4")
    a(f"s_cmp_lt_u32 s68, {NATT}")
    a("s_cbranch_scc0 L_gather_h")
    a("s_lshr_b32 s76, s68, 2")
    a("s_lshl_b32 s78, s73, 4")
    a("s_add_u32 s78, s78, s76")
    a(f"s_mul_i32 s78, s78, {8*PART_STRIDE}")
    a(f"s_add_u32 s20, s78, {WS_PART}")
    for s in range(1, 8):
        a(f"s_add_u32 s{20+s}, s20, {PART_STRIDE*s}")
    a("s_and_b32 s79, s68, 3")
    a("s_lshl_b32 s79, s79, 9")
    a("v_lshl_add_u32 v7, v0, 3, s79")
    a("s_bfe_u32 s79, s68, 0x10001")
    a("s_lshl_b32 s79, s79, 4")
    a("s_add_u32 s79, s79, 2048")
    a("v_and_b32 v8, 7, v0")
    a(f"v_mul_u32_u24 v8, {PART_STRIDE}, v8")
    a("v_add_u32 v8, s79, v8")
    a("s_lshl_b32 s79, s73, 8")
    a("v_lshl_add_u32 v6, v0, 1, s79")
    GS = lambda k: 48 + 20 * k
    def g_issue(k):
        a(f"buffer_load_dwordx4 v[{GS(k)}:{GS(k)+3}], v8, s[{SWS}:{SWS+3}], s20 offen sc1")
        for s in range(8):
            a(f"buffer_load_dwordx2 v[{GS(k)+4+2*s}:{GS(k)+5+2*s}], v7, s[{SWS}:{SWS+3}], s{20+s} offen sc1")
    def g_check(k):
        tagfold([GS(k) + 1, GS(k) + 3] + [GS(k) + 5 + 2*s for s in range(8)], 9, 10)
    def g_post(k):
        B = GS(k)
        a(f"v_mov_b32 v2, v{B}")
        for m in ("quad_perm:[1,0,3,2]", "quad_perm:[2,3,0,1]", "row_half_mirror"):
            a("s_nop 1")
            a(f"v_max_f32_dpp v2, v2, v2 {m} row_mask:0xf bank_mask:0xf")
        a(f"v_sub_f32 v3, v{B}, v2")
        a("v_mul_f32 v3, s87, v3")
        a("v_exp_f32 v3, v3")
        a("s_nop 0")
        a(f"v_mul_f32 v4, v3, v{B+2}")
        for m in ("quad_perm:[1,0,3,2]", "quad_perm:[2,3,0,1]", "row_half_mirror"):
            a("s_nop 1")
            a(f"v_add_f32_dpp v4, v4, v4 {m} row_mask:0xf bank_mask:0xf")
        for s in range(8):
            a(f"v_readlane_b32 s{4+s}, v3, {s}")
        a("v_rcp_f32 v5, v4")
        a(f"v_mul_f32 v2, s4, v{B+4}")
        a(f"v_mul_f32 v9, s5, v{B+6}")
        for s in range(2, 8, 2):
            a(f"v_fmac_f32 v2, s{4+s}, v{B+4+2*s}")
            a(f"v_fmac_f32 v9, s{5+s}, v{B+6+2*s}")
    poll("L_pollp", nset1, 9, g_issue, g_check, g_post, sleep=psleep)
    stamp(8)
    a("v_add_f32 v3, v2, v9")
    a("v_mul_f32 v9, v3, v5")
    a("v_fma_f32 v3, -v9, v4, v3")
    a("v_fma_f32 v3, v3, v5, v9")
    a("v_cvt_pk_bf16_f32 v3, v3, v3")
    a(f"ds_write_b16 v6, v3 offset:{L_Z}")
    a("s_branch L_zdone")
    a("L_gather_h:")
    a(f"s_sub_u32 s76, s68, {NATT}")
    a("s_mul_i32 s76, s76, 12288")
    a("s_lshl_b32 s78, s73, 10")
    a("s_add_u32 s78, s78, s76")
    a(f"s_add_u32 s78, s78, {WS_GP}")
    a("s_add_u32 s79, s78, 4096")
    a("s_add_u32 s80, s78, 8192")
    GB = 48
    def h_issue(k):
        for i in range(6):
            a(f"buffer_load_dwordx4 v[{GB+4*i}:{GB+4*i+3}], v{VOV}, s[{SWS}:{SWS+3}], s{78 + i//2} offen offset:{2048*(i%2)} sc1")
    poll("L_pollh", 1, 6, h_issue, lambda k: tagfold([GB + 4*i + kk for i in range(6) for kk in (1, 3)], 9, 10), lambda k: None, sleep=1)
    for m in range(2):
        for k in (0, 2):
            r = GB + 12 * m + k
            a(f"v_add_f32 v{r}, v{r}, v{r+4}")
            a(f"v_add_f32 v{r}, v{r}, v{r+8}")
            bf16r(a, r)
    k0 = math.sqrt(2.0 / math.pi)
    a(f"v_mov_b32 v11, {f32(0.044715)}")
    for g in (GB, GB + 2):
        a(f"v_mul_f32 v10, v{g}, v{g}")
        a(f"v_mul_f32 v10, v10, v{g}")
        a(f"v_fma_f32 v10, v10, v11, v{g}")
        a(f"v_mul_f32 v10, {f32(-2.0*k0*LOG2E)}, v10")
        a("v_exp_f32 v10, v10")
        a("s_nop 0")
        a("v_add_f32 v10, 1.0, v10")
        a("v_rcp_f32 v10, v10")
        a("s_nop 0")
        a(f"v_mul_f32 v{g}, v{g}, v10")
        bf16r(a, g)
        a(f"v_mul_f32 v{g}, v{g}, v{g+12}")
        a(f"v_cvt_pk_bf16_f32 v{g}, v{g}, v{g}")
    a("s_lshl_b32 s79, s73, 7")
    a("v_lshl_add_u32 v6, v0, 1, s79")
    a(f"ds_write_b16 v6, v{GB} offset:{L_Z}")
    a(f"ds_write_b16 v6, v{GB+2} offset:{L_Z+256}")
    a("L_zdone:")
    a("s_waitcnt lgkmcnt(0)")
    a("s_barrier")
    a("s_branch L_finish")
    a("L_notcomb:")
    a(f"s_cmp_lt_u32 s12, {NRED}")
    a("s_cbranch_scc0 L_finish")
    a("s_cmp_ge_u32 s3, 6")
    a("s_cbranch_scc0 L_finish")
    a("s_lshl_b32 s73, s12, 1")
    a("s_add_u32 s73, s73, s3")
    a("s_sub_u32 s73, s73, 6")
    a("v_lshrrev_b32 v6, 2, v0")
    a("v_mul_u32_u24 v6, 9216, v6")
    a("v_and_b32 v7, 3, v0")
    a("s_lshl_b32 s72, s73, 2")
    a("v_add_u32 v7, s72, v7")
    a("v_lshl_add_u32 v6, v7, 4, v6")
    a("v_lshlrev_b32 v7, 1, v7")
    a(f"buffer_load_ushort v2, v7, s[{SX}:{SX+3}], 0 offen")
    a(f"buffer_load_ushort v3, v7, s[{SX}:{SX+3}], 0 offen offset:1152")
    a("v_cmp_gt_u32 vcc, 16, v0")
    a(f"v_mov_b32 v8, {OOB}")
    a("s_nop 0")
    a("v_cndmask_b32 v8, v8, v6, vcc")
    for i in range(7):
        a(f"s_mov_b32 s{20+i}, {WS_YP + 9216*16*i}")
    FB = 16
    def f_issue(k):
        for i in range(3):
            a(f"buffer_load_dwordx4 v[{FB+4*i}:{FB+4*i+3}], v{6 if i < 2 else 8}, s[{SWS}:{SWS+3}], s{24+i} offen sc1")
    def f_check(k):
        a(f"v_mov_b32 v9, s{STAG}")
        a(f"v_cndmask_b32 v{FB+9}, v9, v{FB+9}, vcc")
        a(f"v_cndmask_b32 v{FB+11}, v9, v{FB+11}, vcc")
        tagfold([FB + 4*i + kk for i in range(3) for kk in (1, 3)], 9, 10)
    poll("L_pollf", 1, 3, f_issue, f_check, lambda k: None, sleep=2)
    for i in range(1, 3):
        a(f"v_add_f32 v{FB}, v{FB}, v{FB+4*i}")
        a(f"v_add_f32 v{FB+2}, v{FB+2}, v{FB+4*i+2}")
    def red16(r0, r1):
        a("s_nop 1")
        a(f"v_permlane32_swap_b32 v{r0}, v{r1}")
        a("s_nop 1")
        a(f"v_add_f32 v{r0}, v{r0}, v{r1}")
        for m in ("row_ror:4", "row_ror:8"):
            a("s_nop 1")
            a(f"v_add_f32_dpp v{r0}, v{r0}, v{r0} {m} row_mask:0xf bank_mask:0xf")
        xchg(a, r0, r1, 16)
    red16(FB, FB + 2)
    bf16r(a, FB)
    a("v_cmp_gt_u32 vcc, 32, v0")
    a("v_add_u32 v4, 1152, v7")
    a("s_nop 0")
    a("v_cndmask_b32 v2, v3, v2, vcc")
    a("v_cndmask_b32 v7, v4, v7, vcc")
    a("v_lshlrev_b32 v2, 16, v2")
    stamp(8)
    YS = lambda k: 32 + 16 * k
    def y_issue(k):
        for i in range(4):
            a(f"buffer_load_dwordx4 v[{YS(k)+4*i}:{YS(k)+4*i+3}], v6, s[{SWS}:{SWS+3}], s{20+i} offen sc1")
    def y_post(k):
        B = YS(k)
        a(f"v_add_f32 v12, v{B}, v{B+4}")
        a(f"v_add_f32 v13, v{B+2}, v{B+6}")
        a(f"v_add_f32 v14, v{B+8}, v{B+12}")
        a(f"v_add_f32 v15, v{B+10}, v{B+14}")
    poll("L_polly", nset2, 4, y_issue, lambda k: tagfold([YS(k) + 4*i + kk for i in range(4) for kk in (1, 3)], 9, 10), y_post, sleep=psleep)
    stamp(9)
    a("v_add_f32 v12, v12, v14")
    a("v_add_f32 v13, v13, v15")
    red16(12, 13)
    bf16r(a, 12)
    a("v_add_f32 v2, v2, v12")
    bf16r(a, 2)
    a(f"v_add_f32 v2, v2, v{FB}")
    a("v_cvt_pk_bf16_f32 v2, v2, v2")
    a("s_mov_b32 exec_lo, 0xf")
    a("s_mov_b32 exec_hi, 0xf")
    a(f"buffer_store_short v2, v7, s[{SOUT}:{SOUT+3}], 0 offen")
    a("s_cmp_eq_u32 s73, 0")
    a("s_cbranch_scc0 L_noepoch")
    a(f"s_sub_u32 s72, s{STAG}, {(TAGC - 1):#x}")
    a("v_mov_b32 v4, s72")
    a(f"v_mov_b32 v5, {WS_EPOCH}")
    a("s_mov_b64 exec, 1")
    a(f"buffer_store_dword v4, v5, s[{SWS}:{SWS+3}], 0 offen sc1")
    a("L_noepoch:")
    a("s_mov_b64 exec, -1")
    stamp(10)
    a("L_finish:")
    if ts:
        stamp(11)
        a("s_lshl_b32 s72, s2, 3")
        a("s_add_u32 s72, s72, s3")
        a("s_lshl_b32 s72, s72, 8")
        a(f"s_add_u32 s72, s72, {WS_TS}")
        a("v_lshlrev_b32 v1, 2, v0")
        a(f"buffer_store_dword v{VTS}, v1, s[{SWS}:{SWS+3}], s72 offen")
        if dbgts:
            a(f"s_cmp_lt_u32 s12, {NRED}")
            a("s_cbranch_scc0 L_end")
            a("s_cmp_eq_u32 s3, 7")
            a("s_cbranch_scc0 L_end")
            a("s_load_dwordx2 s[4:5], s[0:1], 80")
            a("s_waitcnt lgkmcnt(0)")
            a("s_mov_b32 s6, 256")
            a("s_mov_b32 s7, 0x20000")
            a(f"v_not_b32 v2, v{VTS}")
            a("s_mov_b64 exec, 0xffff")
            a(f"buffer_atomic_umax v{VTS}, v1, s[4:7], 0 offen")
            a("s_mov_b64 exec, 1")
            a(f"buffer_atomic_umax v2, v1, s[4:7], 0 offen offset:4")
    a("L_end:")
    a("s_endpgm")
    a(".p2align 6")
    a(".type role_tab,@object")
    a("role_tab:")
    for d0, d1 in role_table(pool, ea, ec, eg, par, 0 if fearly is None else round(pool / 7) - fearly):
        a(f".long {d0:#x}, {d1:#x}")
    a(".size role_tab, 2048")
    out = HEADER
    out += f"; @launch grid=(256,1,1) block=(512,1,1) lds={LDS_SIZE}\n"
    out += '.amdgcn_target "amdgcn-amd-amdhsa--gfx950"\n.text\n'
    out += a.text()
    k = Asm()
    k('.section .rodata,"a"')
    k(".p2align 6")
    k.kd(NAME, NV + 64, NV)
    out += k.text()
    return out

if __name__ == "__main__":
    cfg = json.loads(sys.argv[2]) if len(sys.argv) > 2 else {}
    open(sys.argv[1], "w").write(gen(**cfg))
```
